```python
import torch

def _softmax(x, axis=-1):
    return torch.softmax(x, dim=axis)
def _gelu(x):
    return torch.nn.functional.gelu(x, approximate="tanh")
def _silu(x):
    return torch.nn.functional.silu(x)
def _sigmoid(x):
    return torch.sigmoid(x)
def _layernorm(x, axis=-1, eps=1e-5):
    m = x.mean(dim=axis, keepdim=True)
    v = x.var(dim=axis, keepdim=True, unbiased=False)
    return (x - m) / torch.sqrt(v + eps)
def _scatter_add(tgt, idx, src, axis=0):
    return tgt.clone().index_add_(axis, idx, src)
def _segment_sum(src, seg, n):
    out = torch.zeros((n,) + src.shape[1:], dtype=src.dtype)
    return out.index_add_(0, seg, src)
def _pad(x, pw):
    flat = tuple(v for pair in reversed(pw) for v in pair)
    return torch.nn.functional.pad(x, flat)

kernel_name = 'standalone__edge_featured_mpnn_egc__graph'

def setup_inputs():

    _w = (lambda a: (lambda t: t.to(torch.bfloat16) if t.is_floating_point() else t)(torch.as_tensor(a)))
    N, deg, D, De = 10000, 64, 64, max(16, 1)
    E = N * deg
    return {
        "x": _w((lambda *s: torch.randn(*s, dtype=torch.bfloat16) * 0.2)(N, D)),
        "e_attr": _w((lambda *s: torch.randn(*s, dtype=torch.bfloat16) * 0.2)(E, De)),
        "src": _w((lambda lo, hi, *s: torch.randint(lo, hi, s))(0, N, E).to(torch.int64)),
        "dst": _w((lambda lo, hi, *s: torch.randint(lo, hi, s))(0, N, E).to(torch.int64)),
        "u_w": _w((lambda *s: torch.randn(*s, dtype=torch.bfloat16) * 0.05)(D, D)),
        "v_w": _w((lambda *s: torch.randn(*s, dtype=torch.bfloat16) * 0.05)(D, D)),
        "g_w": _w((lambda *s: torch.randn(*s, dtype=torch.bfloat16) * 0.2)(2 * D + De, D)),
    }

def reference(x, e_attr, src, dst, u_w, v_w, g_w):
    N, D = x.shape
    g_in = torch.concatenate([x[dst], x[src], e_attr], axis=-1)
    eta = _sigmoid(g_in @ g_w)
    hv = x @ v_w
    msg = eta * hv[src]
    agg = _segment_sum(msg, dst, N)
    return _silu(x @ u_w + agg)
```

```python
import sys

NAME = "standalone__edge_featured_mpnn_egc__graph"
N, E, D = 10000, 640000, 64
NCH, CH = 250, 2560
BN = 20
R_OFF, O_OFF, W_OFF = 0, 0x280000, 0x300000
WS_BYTES = 0x310000
NEG_LOG2E = 0xBFB8AA3B

class Asm:
    def __init__(self): self.l = []
    def __call__(self, s):
        for x in s.split("\n"):
            x = x.strip()
            if x: self.l.append(("" if x.endswith(":") else "    ") + x)
    def text(self): return "\n".join(self.l) + "\n"

def vr(b, n=1): return f"v{b}" if n == 1 else f"v[{b}:{b+n-1}]"

def dpp_scan(a, v, pad="s_nop 1"):
    for sh in (1, 2, 4, 8):
        a(pad)
        a(f"v_add_u32_dpp v{v}, v{v}, v{v} row_shr:{sh} row_mask:0xf bank_mask:0xf bound_ctrl:0")
    a(pad)
    a(f"v_add_u32_dpp v{v}, v{v}, v{v} row_bcast:15 row_mask:0xa bank_mask:0xf")
    a(pad)
    a(f"v_add_u32_dpp v{v}, v{v}, v{v} row_bcast:31 row_mask:0xc bank_mask:0xf")

def gen_k1(opt):
    a = Asm()
    a(f"""
    s_cmp_ge_u32 s2, {NCH+4}
    s_cbranch_scc1 K1_END
    s_load_dwordx4 s[4:7], s[0:1], 16
    s_load_dwordx2 s[8:9], s[0:1], 72
    s_cmp_ge_u32 s2, {NCH}
    s_cbranch_scc1 K1_W
    v_lshlrev_b32 v1, 4, v0
    s_mul_i32 s3, s2, {CH*4}
    v_add_u32 v2, s3, v1
    v_lshlrev_b32 v3, 2, v0
    v_mov_b32 v4, 0
    ds_write_b32 v3, v4
    s_waitcnt lgkmcnt(0)
    global_load_dwordx4 v[8:11], v2, s[6:7]
    global_load_dwordx4 v[12:15], v2, s[4:5]
    s_barrier
    s_mov_b32 s10, 52429
    s_movk_i32 s11, -{BN}
    v_mov_b32 v5, 1
    v_lshlrev_b32 v6, 7, v0
    v_and_b32 v7, 63, v0
    v_lshlrev_b32 v7, 5, v7
    s_waitcnt vmcnt(1)
    """)
    for i in range(4):
        a(f"""
        v_mul_u32_u24 v{16+i}, s10, v{8+i}
        v_lshrrev_b32 v{16+i}, 20, v{16+i}
        v_mad_i32_i24 v{20+i}, v{16+i}, s11, v{8+i}
        v_and_b32 v28, 14, v{16+i}
        v_lshlrev_b32 v28, 7, v28
        v_lshrrev_b32 v29, 4, v{16+i}
        v_lshl_or_b32 v28, v29, 3, v28
        v_and_b32 v29, 1, v{16+i}
        v_lshl_or_b32 v{16+i}, v29, 2, v28
        ds_add_rtn_u32 v{24+i}, v{16+i}, v5
        """)
    a("s_waitcnt vmcnt(0)")
    for i in range(4):
        a(f"v_lshl_or_b32 v{20+i}, v{12+i}, 17, v{20+i}")
        a(f"v_add3_u32 v{20+i}, v{20+i}, v6, {32*i}" if 32*i <= 64 else f"v_add_u32 v{20+i}, {32*i}, v{20+i}\nv_add_u32 v{20+i}, v6, v{20+i}")
    a("""
    s_waitcnt lgkmcnt(0)
    s_barrier
    ds_read_b128 v[32:35], v7
    ds_read_b128 v[36:39], v7 offset:16
    s_waitcnt lgkmcnt(0)
    v_add_u32 v41, v32, v33
    v_add_u32 v42, v41, v34
    v_add_u32 v43, v42, v35
    v_add_u32 v44, v43, v36
    v_add_u32 v45, v44, v37
    v_add_u32 v46, v45, v38
    v_add_u32 v47, v46, v39
    v_mov_b32 v48, v47
    """)
    dpp_scan(a, 48)
    a("""
    v_sub_u32 v52, v48, v47
    v_add_u32 v53, v52, v32
    v_add_u32 v54, v52, v41
    v_add_u32 v55, v52, v42
    v_add_u32 v56, v52, v43
    v_add_u32 v57, v52, v44
    v_add_u32 v58, v52, v45
    v_add_u32 v59, v52, v46
    ds_write_b128 v7, v[52:55] offset:2048
    ds_write_b128 v7, v[56:59] offset:2064
    """)
    for i in range(4):
        a(f"ds_read_b32 v{28+i}, v{16+i} offset:2048")
    a(f"""
    v_readfirstlane_b32 s12, v0
    s_cmp_lg_u32 s12, 0
    s_cbranch_scc1 K1_NOO
    """)
    for k in range(8):
        a(f"v_lshl_or_b32 v{60+k}, v{32+k}, 16, v{52+k}")
    a(f"""
    s_lshl_b32 s12, s2, 11
    s_add_u32 s12, s12, {O_OFF}
    v_add_u32 v68, s12, v7
    global_store_dwordx4 v68, v[60:63], s[8:9]
    global_store_dwordx4 v68, v[64:67], s[8:9] offset:16
    K1_NOO:
    s_waitcnt lgkmcnt(0)
    """)
    for i in range(4):
        a(f"v_add_lshl_u32 v{28+i}, v{28+i}, v{24+i}, 2")
        a(f"ds_write_b32 v{28+i}, v{20+i} offset:4096")
    a(f"""
    s_waitcnt lgkmcnt(0)
    s_barrier
    ds_read_b128 v[32:35], v1 offset:4096
    s_waitcnt lgkmcnt(0)
    global_store_dwordx4 v2, v[32:35], s[8:9]
    s_endpgm
    K1_W:
    s_load_dwordx4 s[12:15], s[0:1], 32
    s_load_dwordx2 s[16:17], s[0:1], 48
    v_lshrrev_b32 v1, 6, v0
    s_nop 0
    v_readfirstlane_b32 s3, v1
    s_sub_u32 s10, s2, {NCH}
    s_mul_i32 s10, s10, 10
    s_add_u32 s10, s10, s3
    s_cmp_ge_u32 s10, 34
    s_cbranch_scc1 K1_END
    s_waitcnt lgkmcnt(0)
    s_mov_b32 s18, s16
    s_mov_b32 s19, s17
    s_mov_b32 s22, 1.0
    s_cmp_ge_u32 s10, 10
    s_cbranch_scc1 K1_W2
    s_cmp_ge_u32 s10, 5
    s_cselect_b32 s21, 1, 0
    s_mul_i32 s20, s21, 5
    s_sub_u32 s20, s10, s20
    s_lshl_b32 s20, s20, 4
    s_add_u32 s20, s20, 64
    s_mov_b32 s22, {NEG_LOG2E:#x}
    s_branch K1_W3
    K1_W2:
    s_sub_u32 s23, s10, 10
    s_and_b32 s20, s23, 3
    s_lshl_b32 s20, s20, 4
    s_bfe_u32 s21, s23, 0x10002
    s_lshr_b32 s23, s23, 3
    s_cmp_eq_u32 s23, 0
    s_cselect_b32 s18, s14, s18
    s_cselect_b32 s19, s15, s19
    s_cmp_eq_u32 s23, 2
    s_cselect_b32 s18, s12, s18
    s_cselect_b32 s19, s13, s19
    K1_W3:
    s_lshl_b32 s20, s20, 7
    s_lshl_b32 s21, s21, 6
    s_add_u32 s20, s20, s21
    v_and_b32 v2, 31, v0
    v_bfe_u32 v3, v0, 5, 1
    v_lshlrev_b32 v2, 1, v2
    v_lshl_or_b32 v2, v3, 10, v2
    v_add_u32 v2, s20, v2
    """)
    for t in range(8):
        a(f"global_load_ushort v{8+t}, v2, s[18:19] offset:{128*t}")
    a(f"""
    v_and_b32 v4, 63, v0
    v_lshlrev_b32 v4, 4, v4
    s_lshl_b32 s10, s10, 10
    s_add_u32 s10, s10, {W_OFF}
    v_add_u32 v4, s10, v4
    s_waitcnt vmcnt(0)
    """)
    for t in range(8):
        a(f"v_lshlrev_b32 v{8+t}, 16, v{8+t}")
        a(f"v_mul_f32 v{8+t}, s22, v{8+t}")
    for q in range(4):
        a(f"v_cvt_pk_bf16_f32 v{16+q}, v{8+2*q}, v{9+2*q}")
    a("""
    global_store_dwordx4 v4, v[16:19], s[8:9]
    K1_END:
    """)
    return a.text(), 72, 14336

def gen_k2(opt):
    NB = opt.get("NB", 2)
    CAP, LCAP = 1472, 1536
    SLOT = 5120
    RING = 0
    LIST = 8 * NB * SLOT
    TOFF = LIST + 4 * LCAP * 4
    IDT = TOFF + 8 * 2048
    SCR = IDT + 2048
    LDS = SCR + 64
    ELD = LCAP * 4
    DUMMY = (BN << 24) | 0xFFFFFF
    r = {}
    nxt = [1]
    def al(name, n=1, align=1):
        b = (nxt[0] + align - 1) // align * align
        r[name] = b; nxt[0] = b + n; return b
    for nm in ("XA0","XA1","EH","XR0","XR1","XR2","XR3","ER","LX","LE","OC","SC","SR","ONE","ZERO","EL","DL","OA","SA","T0","T1","T2","P","CNT","SEG"):
        al(nm)
    al("XL", 4, 4)
    al("WZ", 40, 4); al("WH", 32, 4); al("WA", 16, 4); al("ACC", 32, 4)
    al("Z", 32, 4); al("H", 32, 4); al("XF", 16, 4); al("EF", 4, 4); al("OH", 8, 4); al("SF", 8, 4)
    NV = nxt[0]
    assert NV <= 256, NV
    V = lambda n, o=0: f"v{r[n]+o}"
    VR = lambda n, o, c: vr(r[n]+o, c)
    REC = r["OH"]
    assert r["SF"] == r["OH"] + 8
    sW, sB, sJ, sRING, sN, sNMAX, sLO, sK, sPF, sDUM, sCONS, sT, sU = range(18, 31)
    s128, s80, sBIG = 32, 33, 34
    a = Asm()
    a(f"""
    s_cmp_ge_u32 s2, {NCH}
    s_cbranch_scc1 K2_END
    s_load_dwordx4 s[36:39], s[0:1], 0
    s_load_dwordx2 s[16:17], s[0:1], 56
    s_load_dwordx2 s[40:41], s[0:1], 72
    v_lshrrev_b32 {V('T0')}, 6, v0
    v_and_b32 {V('T1')}, 63, v0
    v_readfirstlane_b32 s{sW}, {V('T0')}
    s_movk_i32 s{s128}, 128
    s_movk_i32 s{s80}, 80
    s_mov_b32 s{sBIG}, 0x80000000
    s_lshr_b32 s{sB}, s{sW}, 2
    s_and_b32 s{sJ}, s{sW}, 3
    s_mul_i32 s{sRING}, s{sW}, {NB*SLOT}
    s_and_b32 s{sT}, s2, 7
    s_lshl_b32 s{sT}, s{sT}, 5
    s_lshr_b32 s{sU}, s2, 3
    s_add_u32 s{sT}, s{sT}, s{sU}
    s_lshl_b32 s{sT}, s{sT}, 1
    s_add_u32 s{sT}, s{sT}, s{sB}
    s_lshl_b32 s{sT}, s{sT}, 2
    s_add_u32 s{sT}, s{sT}, {O_OFF}
    v_and_b32 {V('SEG')}, 255, v0
    v_lshlrev_b32 {V('T2')}, 11, {V('SEG')}
    v_lshlrev_b32 {V('ER')}, 4, {V('T1')}
    s_lshl_b32 s{sU}, s2, 1
    s_add_u32 s{sU}, s{sU}, s{sB}
    s_mul_i32 s{sU}, s{sU}, {BN*128}
    v_and_b32 {V('OA')}, 31, v0
    v_bfe_u32 {V('EH')}, v0, 5, 1
    v_lshlrev_b32 {V('EH')}, 4, {V('EH')}
    v_lshl_add_u32 {V('SA')}, {V('OA')}, 7, {V('EH')}
    s_waitcnt lgkmcnt(0)
    s_mov_b32 s4, s36
    s_mov_b32 s5, s37
    s_mov_b32 s6, {N*128}
    s_mov_b32 s7, 0x20000
    s_mov_b32 s8, s38
    s_mov_b32 s9, s39
    s_mov_b32 s10, {E*32}
    s_mov_b32 s11, 0x20000
    s_mov_b32 s12, s40
    s_mov_b32 s13, s41
    s_mov_b32 s14, {WS_BYTES}
    s_mov_b32 s15, 0x20000
    buffer_load_dword {V('CNT')}, {V('T2')}, s[12:15], s{sT} offen
    s_lshl_b32 s{sT}, s{sW}, 10
    """)
    for i in range(5):
        a(f"""
        s_add_u32 m0, s{sT}, {i*8192}
        s_add_u32 s{sK}, s{sT}, {W_OFF + i*8192}
        buffer_load_dwordx4 {V('ER')}, s[12:15], s{sK} offen lds
        """)
    for ks in range(4):
        a(f"buffer_load_dwordx4 {VR('XF',4*ks,4)}, {V('SA')}, s[4:7], s{sU} offen offset:{32*ks}")
    def fill_lists():
        a(f"v_lshlrev_b32 {V('T0')}, 4, v0")
        for i in range(4): a(f"v_mov_b32 {V('Z',i)}, {DUMMY:#x}")
        a(f"v_add_u32 {V('T0')}, {LIST}, {V('T0')}")
        for i in range(4*LCAP*4 // 8192):
            a(f"ds_write_b128 {V('T0')}, {VR('Z',0,4)} offset:{8192*i}")
    fill_lists()
    a(f"""
    v_mov_b32 {V('ZERO')}, 0
    v_mov_b32 {V('ONE')}, 0x3f80
    v_mov_b32 {V('Z',4)}, 0
    v_mov_b32 {V('Z',5)}, 0
    v_mov_b32 {V('Z',6)}, 0
    v_mov_b32 {V('Z',7)}, 0
    s_lshl_b32 s{sT}, s{sW}, 11
    s_add_u32 s{sT}, s{sT}, {TOFF}
    v_add_u32 {V('T0')}, s{sT}, {V('ER')}
    ds_write_b128 {V('T0')}, {VR('Z',4,4)}
    ds_write_b128 {V('T0')}, {VR('Z',4,4)} offset:1024
    v_lshrrev_b32 {V('T2')}, 4, {V('OA')}
    v_lshlrev_b32 {V('T2')}, 5, {V('T2')}
    v_bfe_u32 {V('T0')}, {V('OA')}, 2, 1
    v_lshl_or_b32 {V('T2')}, {V('T0')}, 4, {V('T2')}
    v_bfe_u32 {V('T0')}, {V('OA')}, 3, 1
    v_lshl_or_b32 {V('T2')}, {V('T0')}, 3, {V('T2')}
    v_and_b32 {V('T0')}, 3, {V('OA')}
    v_lshl_or_b32 {V('T2')}, {V('T0')}, 1, {V('T2')}
    v_add_u32 {V('SC')}, s{sT}, {V('T2')}
    v_subrev_u32 {V('T0')}, 12, {V('OA')}
    v_cmp_gt_u32 vcc, {BN}, {V('OA')}
    v_add_u32 {V('OC')}, {IDT}, {V('EH')}
    v_add_u32 {V('SR')}, s{sT}, {V('EH')}
    v_cndmask_b32 {V('T0')}, {V('T0')}, {V('OA')}, vcc
    v_mad_u32_u24 {V('SR')}, {V('T0')}, s{s80}, {V('SR')}
    s_cmp_lg_u32 s{sW}, 0
    s_cbranch_scc1 K2_NOID
    v_add_u32 {V('DL')}, {IDT}, {V('ER')}
    ds_write_b128 {V('DL')}, {VR('Z',4,4)}
    ds_write_b128 {V('DL')}, {VR('Z',4,4)} offset:1024
    v_mad_u32_u24 {V('DL')}, {V('OA')}, s{s80}, {V('T2')}
    v_add_u32 {V('DL')}, {IDT}, {V('DL')}
    s_mov_b64 exec, {(1<<BN)-1:#x}
    ds_write_b16 {V('DL')}, {V('ONE')}
    s_mov_b64 exec, -1
    K2_NOID:
    v_lshrrev_b32 {V('T0')}, 4, {V('T1')}
    v_and_b32 {V('XA0')}, 7, {V('T1')}
    v_xor_b32 {V('XA0')}, {V('XA0')}, {V('T0')}
    v_lshlrev_b32 {V('XA0')}, 4, {V('XA0')}
    v_xor_b32 {V('XA1')}, 64, {V('XA0')}
    v_bfe_u32 {V('T0')}, {V('OA')}, 1, 3
    v_lshlrev_b32 {V('T0')}, 4, {V('T0')}
    v_xor_b32 {V('T0')}, {V('T0')}, {V('EH')}
    v_lshlrev_b32 {V('T2')}, 7, {V('OA')}
    v_add_u32 {V('T2')}, s{sRING}, {V('T2')}
    """)
    for ks in range(4):
        a(f"v_xor_b32 {V('XR%d'%ks)}, {32*ks}, {V('T0')}")
        a(f"v_add_u32 {V('XR%d'%ks)}, {V('XR%d'%ks)}, {V('T2')}")
    a(f"""
    s_mul_i32 s{sT}, s{sB}, {2*ELD}
    s_add_u32 s{sT}, s{sT}, {LIST}
    v_lshrrev_b32 {V('T0')}, 3, {V('T1')}
    v_lshlrev_b32 {V('T0')}, 4, {V('T0')}
    v_add_u32 {V('LX')}, s{sT}, {V('T0')}
    v_and_b32 {V('T0')}, 7, {V('OA')}
    v_lshrrev_b32 {V('T2')}, 3, {V('OA')}
    v_lshl_add_u32 {V('T0')}, {V('T0')}, 2, {V('T2')}
    v_lshlrev_b32 {V('T0')}, 2, {V('T0')}
    s_add_u32 s{sU}, s{sT}, {ELD}
    v_add_u32 {V('LE')}, s{sU}, {V('T0')}
    s_mov_b32 s35, s{sT}
    v_cmp_gt_u32 vcc, {NCH}, {V('SEG')}
    v_mul_u32_u24 {V('EL')}, {CH}, {V('SEG')}
    s_waitcnt vmcnt(9)
    v_cndmask_b32 {V('CNT')}, 0, {V('CNT')}, vcc
    v_and_b32 {V('T0')}, 0xffff, {V('CNT')}
    v_lshrrev_b32 {V('CNT')}, 16, {V('CNT')}
    v_add_lshl_u32 {V('SEG')}, {V('EL')}, {V('T0')}, 2
    """)
    def issue_loads():
        for k in range(4):
            a(f"v_cmp_lt_i32 vcc, {4*k}, {V('T1')}")
            a(f"v_mov_b32 {V('XL',k)}, s{sBIG}")
            a(f"s_nop 0")
            a(f"v_cndmask_b32 {V('XL',k)}, {V('XL',k)}, {V('T0')}, vcc")
            a(f"buffer_load_dwordx4 {vr(REC+4*k,4)}, {V('XL',k)}, s[12:15], 0 offen offset:{16*k}")
    a(f"v_mov_b32 {V('T0')}, {V('SEG')}")
    a(f"v_mov_b32 {V('T1')}, {V('CNT')}")
    issue_loads()
    a(f"v_mov_b32 {V('P')}, {V('CNT')}")
    dpp_scan(a, r['P'])
    a(f"""
    s_lshl_b32 s{sT}, s{sW}, 2
    s_add_u32 s{sT}, s{sT}, {SCR}
    v_mov_b32 {V('T2')}, s{sT}
    s_mov_b32 exec_lo, 0
    s_mov_b32 exec_hi, 0x80000000
    ds_write_b32 {V('T2')}, {V('P')}
    s_mov_b64 exec, -1
    v_sub_u32 {V('P')}, {V('P')}, {V('CNT')}
    v_mov_b32 {V('T2')}, {SCR}
    s_waitcnt vmcnt(4) lgkmcnt(0)
    s_barrier
    ds_read_b128 {VR('Z',0,4)}, {V('T2')}
    ds_read_b128 {VR('Z',4,4)}, {V('T2')} offset:16
    s_waitcnt lgkmcnt(0)
    """)
    for i in range(8):
        a(f"v_readfirstlane_b32 s{42+i}, {V('Z',i)}")
    for f in range(10): a(f"ds_read_b128 {VR('WZ',4*f,4)}, {V('ER')} offset:{f*1024}")
    for f in range(8): a(f"ds_read_b128 {VR('WH',4*f,4)}, {V('ER')} offset:{(10+f)*1024}")
    for f in range(8): a(f"ds_read_b128 {VR('H',4*f,4)}, {V('ER')} offset:{(18+f)*1024}")
    for f in range(8): a(f"ds_read_b128 {VR('Z',4*f,4)}, {V('ER')} offset:{(26+f)*1024}")
    a(f"""
    v_add_u32 {V('ER')}, s{sRING}, {V('ER')}
    s_add_u32 s50, s42, s43
    s_add_u32 s51, s50, s44
    s_add_u32 s52, s51, s45
    s_add_u32 s53, s46, s47
    s_add_u32 s54, s53, s48
    s_add_u32 s55, s54, s49
    s_max_u32 s{sNMAX}, s52, s55
    s_cmp_eq_u32 s{sB}, 0
    s_cselect_b32 s{sN}, s52, s55
    s_cselect_b32 s42, s42, s46
    s_cselect_b32 s50, s50, s53
    s_cselect_b32 s51, s51, s54
    s_cmp_eq_u32 s{sJ}, 1
    s_cselect_b32 s{sT}, s42, 0
    s_cmp_eq_u32 s{sJ}, 2
    s_cselect_b32 s{sT}, s50, s{sT}
    s_cmp_eq_u32 s{sJ}, 3
    s_cselect_b32 s{sT}, s51, s{sT}
    v_add_u32 {V('P')}, s{sT}, {V('P')}
    s_mov_b32 s{sLO}, 0
    v_sub_u32 {V('T2')}, {CAP}, {V('P')}
    v_min_i32 {V('T1')}, {V('T1')}, {V('T2')}
    v_lshlrev_b32 {V('T2')}, 2, {V('P')}
    v_add_u32 {V('T2')}, s35, {V('T2')}
    s_branch K2_WRITE
    K2_WIN:
    s_barrier
    """)
    fill_lists()
    a(f"""
    v_sub_u32 {V('T2')}, s{sLO}, {V('P')}
    v_add_u32 {V('T1')}, {CAP}, {V('T2')}
    v_max_i32 {V('T2')}, 0, {V('T2')}
    v_min_i32 {V('T1')}, {V('T1')}, {V('CNT')}
    v_sub_u32 {V('T1')}, {V('T1')}, {V('T2')}
    v_lshl_add_u32 {V('T0')}, {V('T2')}, 2, {V('SEG')}
    v_add_u32 {V('T2')}, {V('T2')}, {V('P')}
    v_subrev_u32 {V('T2')}, s{sLO}, {V('T2')}
    v_lshlrev_b32 {V('T2')}, 2, {V('T2')}
    v_add_u32 {V('T2')}, s35, {V('T2')}
    v_and_b32 {V('EL')}, 255, v0
    v_mul_u32_u24 {V('EL')}, {CH}, {V('EL')}
    s_waitcnt lgkmcnt(0)
    s_barrier
    K2_JNEXT:
    """)
    issue_loads()
    a("K2_WRITE:")
    a("s_waitcnt vmcnt(0)")
    for j in range(16):
        rj = REC + j
        a(f"""
        v_cmp_lt_i32 vcc, {j}, {V('T1')}
        s_and_b64 exec, exec, vcc
        s_cbranch_scc0 K2_WDONE
        v_lshrrev_b32 {V('XL',0)}, 17, v{rj}
        v_bfe_u32 {V('XL',1)}, v{rj}, 5, 12
        v_and_b32 {V('XL',2)}, 31, v{rj}
        v_add_u32 {V('XL',1)}, {V('XL',1)}, {V('EL')}
        ds_write_b32 {V('T2')}, {V('XL',0)} offset:{4*j}
        v_lshl_or_b32 {V('XL',1)}, {V('XL',2)}, 24, {V('XL',1)}
        ds_write_b32 {V('T2')}, {V('XL',1)} offset:{ELD+4*j}
        """)
    a(f"""
    s_mov_b64 exec, -1
    v_subrev_u32 {V('T1')}, 16, {V('T1')}
    v_add_u32 {V('T0')}, 64, {V('T0')}
    v_add_u32 {V('T2')}, 64, {V('T2')}
    v_cmp_lt_i32 vcc, 0, {V('T1')}
    s_cmp_lg_u64 vcc, 0
    s_cbranch_scc1 K2_JNEXT
    K2_WDONE:
    s_mov_b64 exec, -1
    s_sub_i32 s{sT}, s{sN}, s{sLO}
    s_max_i32 s{sT}, s{sT}, 0
    s_min_i32 s{sT}, s{sT}, {CAP}
    s_add_u32 s{sT}, s{sT}, 31
    s_lshr_b32 s{sT}, s{sT}, 5
    s_lshl_b32 s{sDUM}, s{sT}, 7
    s_mul_i32 s{sU}, s{sB}, 3
    s_xor_b32 s{sU}, s{sU}, s{sJ}
    s_add_u32 s{sK}, s{sT}, 3
    s_sub_u32 s{sK}, s{sK}, s{sU}
    s_lshr_b32 s{sK}, s{sK}, 2
    s_lshl_b32 s{sPF}, s{sU}, 7
    s_mov_b32 s{sCONS}, s{sPF}
    s_waitcnt lgkmcnt(0)
    s_barrier
    """)
    def list_addr_pf():
        return [f"s_min_u32 s{sT}, s{sPF}, s{sDUM}",
                f"v_add_u32 {V('T1')}, s{sT}, {V('LX')}",
                f"v_add_u32 {V('T2')}, s{sT}, {V('LE')}",
                f"s_add_u32 s{sPF}, s{sPF}, 512"]
    def list_read_pf():
        return [f"ds_read_b128 {VR('XL',0,4)}, {V('T1')}", f"ds_read_b32 {V('EL')}, {V('T2')}"]
    def pf_addr():
        return [f"v_mad_u32_u24 {V('XL',q)}, {V('XL',q)}, s{s128}, {V('XA%d'%(q&1))}" for q in range(4)] + \
               [f"v_mad_u32_u24 {V('EL')}, {V('EL')}, 32, {V('EH')}"]
    def pf_dma(slot):
        out = []
        out.append([f"s_add_u32 m0, s{sRING}, {slot*SLOT+4096}", "s_nop 0", f"buffer_load_dwordx4 {V('EL')}, s[8:11], 0 offen lds"])
        for q in range(4):
            out.append([f"s_add_u32 m0, s{sRING}, {slot*SLOT+1024*q}", "s_nop 0", f"buffer_load_dwordx4 {V('XL',q)}, s[4:7], 0 offen lds"])
        return out
    def dl_addr():
        return [f"s_min_u32 s{sU}, s{sCONS}, s{sDUM}",
                f"v_add_u32 {V('T0')}, s{sU}, {V('LE')}",
                f"s_add_u32 s{sCONS}, s{sCONS}, 512"]
    def dl_read(): return [f"ds_read_u8 {V('DL')}, {V('T0')} offset:3"]
    def dl_use():
        return [f"v_mad_u32_u24 {V('OA')}, {V('DL')}, s{s80}, {V('OC')}", f"v_mad_u32_u24 {V('SA')}, {V('DL')}, s{s80}, {V('SC')}"]
    def frag_reads(slot):
        return [f"ds_read_b128 {VR('OH',0,4)}, {V('OA')}", f"ds_read_b128 {VR('OH',4,4)}, {V('OA')} offset:32",
                f"ds_read_b128 {VR('EF',0,4)}, {V('ER')} offset:{slot*SLOT+4096}"] + \
               [f"ds_read_b128 {VR('XF',4*ks,4)}, {V('XR%d'%ks)} offset:{slot*SLOT}" for ks in range(4)]
    def mf(d, A, B, c): return f"v_mfma_f32_32x32x16_bf16 {d}, {A}, {B}, {c}"
    def m_chain(nt):
        z = VR('Z',16*nt,16); h = VR('H',16*nt,16)
        o = [mf(z, VR('OH',0,4), VR('WA',8*nt,4), "0"), mf(z, VR('OH',4,4), VR('WA',8*nt+4,4), z),
             mf(z, VR('EF',0,4), VR('WZ',20*nt+16,4), z)]
        o += [mf(z, VR('XF',4*ks,4), VR('WZ',20*nt+4*ks,4), z) for ks in range(4)]
        o += [mf(h, VR('XF',4*ks,4), VR('WH',16*nt+4*ks,4), "0" if ks == 0 else h) for ks in range(4)]
        return o
    def s_chain(nt):
        acc = VR('ACC',16*nt,16)
        return [mf(acc, VR('SF',4*s,4), VR('Z',16*nt+4*s,4), acc) for s in range(2)]
    def v_seq(nt):
        z = r['Z'] + 16*nt; h = r['H'] + 16*nt
        o = [(f"v_exp_f32 v{z+i}, v{z+i}", 8) for i in range(16)]
        o += [(f"v_add_f32 v{z+i}, 1.0, v{z+i}", 4) for i in range(16)]
        o += [(f"v_rcp_f32 v{z+i}, v{z+i}", 8) for i in range(16)]
        o += [(f"v_mul_f32 v{z+i}, v{z+i}, v{h+i}", 4) for i in range(16)]
        o += [(f"v_cvt_pk_bf16_f32 v{z+q}, v{z+2*q}, v{z+2*q+1}", 4) for q in range(8)]
        return o
    def weave(vs, ms, before, after, gap=24):
        cost = 0; mi = 0
        for ins, c in vs:
            while mi < len(ms) and cost >= mi * gap:
                for x in before.get(mi, []): a(x)
                a(ms[mi])
                for x in after.get(mi, []): a(x)
                mi += 1
            a(ins); cost += c
        assert mi == len(ms)
    for sl in range(NB):
        for x in list_addr_pf() + list_read_pf(): a(x)
        a("s_waitcnt lgkmcnt(0)")
        for x in pf_addr(): a(x)
        for g in pf_dma(sl):
            for x in g: a(x)
    for x in dl_addr() + dl_read() + list_addr_pf() + list_read_pf(): a(x)
    a(f"""
    s_cmp_lg_u32 s{sLO}, 0
    s_cbranch_scc1 K2_NOINIT
    s_cmp_lg_u32 s{sJ}, 0
    s_cbranch_scc1 K2_ACC0
    """)
    for nt in range(2):
        acc = VR('ACC',16*nt,16)
        for ks in range(4): a(mf(acc, VR('XF',4*ks,4), VR('Z',16*nt+4*ks,4), "0" if ks == 0 else acc))
    a("s_branch K2_ACC1")
    a("K2_ACC0:")
    for i in range(32): a(f"v_mov_b32 {V('ACC',i)}, 0")
    a("K2_ACC1:")
    for nt in range(2):
        z = VR('Z',16*nt,16)
        for ks in range(4): a(mf(z, VR('XF',4*ks,4), VR('H',16*nt+4*ks,4), "0" if ks == 0 else z))
    a(f"s_mov_b32 s{sT}, {NEG_LOG2E:#x}")
    a("s_nop 15")
    for i in range(32): a(f"v_mul_f32 {V('Z',i)}, s{sT}, {V('Z',i)}")
    for i in range(16): a(f"v_cvt_pk_bf16_f32 {V('WA',i)}, {V('Z',2*i)}, {V('Z',2*i+1)}")
    a("K2_NOINIT:")
    for i in range(8): a(f"v_mov_b32 {V('Z',16+i)}, 0")
    for i in range(8): a(f"v_mov_b32 {V('SF',i)}, 0")
    a(f"""
    s_cmp_eq_u32 s{sK}, 0
    s_cbranch_scc1 K2_WEND
    s_waitcnt lgkmcnt(0)
    """)
    for x in dl_use() + pf_addr(): a(x)
    a(f"s_waitcnt vmcnt({5*(NB-1)})")
    for x in frag_reads(0): a(x)
    a("s_waitcnt lgkmcnt(0)")
    for g in pf_dma(0):
        for x in g: a(x)
    for x in m_chain(0): a(x)
    a("s_nop 7")
    a("K2_LOOP:")
    for u in range(NB):
        nslot = (u + 1) % NB
        ms = s_chain(1) + m_chain(1)
        before = {0: dl_addr() + list_addr_pf(),
                  7: ["s_waitcnt lgkmcnt(0)"] + dl_use() + pf_addr()}
        after = {1: [f"ds_write_b16 {V('SA')}, {V('ONE')}", f"ds_read_b128 {VR('SF',0,4)}, {V('SR')}",
                     f"ds_read_b128 {VR('SF',4,4)}, {V('SR')} offset:32", f"ds_write_b16 {V('SA')}, {V('ZERO')}"] + dl_read() + list_read_pf(),
                 12: [f"s_waitcnt vmcnt({5*(NB-1)})"] + frag_reads(nslot)}
        weave(v_seq(0), ms, before, after)
        ms = s_chain(0) + m_chain(0)
        before = {2+i: [f"s_waitcnt lgkmcnt({6-i})"] for i in range(7)}
        dm = pf_dma(nslot)
        after = {8+i: dm[i] for i in range(5)}
        weave(v_seq(1), ms, before, after)
        a(f"s_sub_u32 s{sK}, s{sK}, 1")
        a(f"s_cmp_eq_u32 s{sK}, 0")
        if u < NB - 1: a("s_cbranch_scc1 K2_LEND")
        else: a("s_cbranch_scc0 K2_LOOP")
    a("K2_LEND:")
    for x in s_chain(1): a(x)
    a(f"""
    K2_WEND:
    s_waitcnt vmcnt(0) lgkmcnt(0)
    s_add_u32 s{sLO}, s{sLO}, {CAP}
    s_cmp_lt_u32 s{sLO}, s{sNMAX}
    s_cbranch_scc1 K2_WIN
    ; ---- epilogue
    s_mul_i32 s{sT}, s{sW}, 6144
    v_and_b32 {V('T0')}, 31, v0
    v_lshlrev_b32 {V('T0')}, 2, {V('T0')}
    v_lshl_add_u32 {V('T0')}, {V('EH')}, 6, {V('T0')}
    v_add_u32 {V('T0')}, s{sT}, {V('T0')}
    s_nop 15
    s_barrier
    """)
    for nt in range(2):
        for q in range(12):
            a(f"ds_write_b32 {V('T0')}, {V('ACC',16*nt+q)} offset:{((q>>2)*8+(q&3))*256+nt*128}")
    a(f"""
    v_and_b32 {V('T1')}, 255, v0
    v_lshlrev_b32 {V('T2')}, 5, {V('T1')}
    s_mul_i32 s{sT}, s{sB}, {4*6144}
    v_add_u32 {V('T2')}, s{sT}, {V('T2')}
    s_lshl_b32 s{sU}, s2, 1
    s_add_u32 s{sU}, s{sU}, s{sB}
    s_mul_i32 s{sU}, s{sU}, {BN*128}
    v_lshlrev_b32 {V('T0')}, 4, {V('T1')}
    v_add_u32 {V('T0')}, s{sU}, {V('T0')}
    v_cmp_gt_u32 vcc, {BN*8}, {V('T1')}
    s_waitcnt lgkmcnt(0)
    s_barrier
    s_and_b64 exec, exec, vcc
    s_cbranch_scc0 K2_END
    """)
    for w in range(4):
        a(f"ds_read_b128 {VR('Z',8*w,4)}, {V('T2')} offset:{w*6144}")
        a(f"ds_read_b128 {VR('Z',8*w+4,4)}, {V('T2')} offset:{w*6144+16}")
    a(f"s_mov_b32 s{sT}, {NEG_LOG2E:#x}")
    a("s_waitcnt lgkmcnt(0)")
    for i in range(8):
        a(f"v_add_f32 {V('Z',i)}, {V('Z',i)}, {V('Z',8+i)}")
        a(f"v_add_f32 {V('Z',16+i)}, {V('Z',16+i)}, {V('Z',24+i)}")
    for i in range(8): a(f"v_add_f32 {V('Z',i)}, {V('Z',i)}, {V('Z',16+i)}")
    for i in range(8): a(f"v_mul_f32 {V('H',i)}, s{sT}, {V('Z',i)}")
    for i in range(8): a(f"v_exp_f32 {V('H',i)}, {V('H',i)}")
    for i in range(8): a(f"v_add_f32 {V('H',i)}, 1.0, {V('H',i)}")
    for i in range(8): a(f"v_rcp_f32 {V('H',i)}, {V('H',i)}")
    for i in range(8): a(f"v_mul_f32 {V('Z',i)}, {V('Z',i)}, {V('H',i)}")
    for q in range(4): a(f"v_cvt_pk_bf16_f32 {V('H',8+q)}, {V('Z',2*q)}, {V('Z',2*q+1)}")
    a(f"global_store_dwordx4 {V('T0')}, {VR('H',8,4)}, s[16:17]")
    a("K2_END:")
    return a.text(), NV, LDS

HDR = open("cdna_kernels/%s.s.ref" % NAME).read().split("; Override launch")[0]

def desc(name, nv, ns=64):
    acc = (nv + 3) // 4 * 4
    return f""".amdhsa_kernel {name}
  .amdhsa_next_free_vgpr {nv}
  .amdhsa_next_free_sgpr {ns}
  .amdhsa_accum_offset {acc}
  .amdhsa_group_segment_fixed_size 0
  .amdhsa_kernarg_size 80
  .amdhsa_user_sgpr_count 2
  .amdhsa_user_sgpr_kernarg_segment_ptr 1
  .amdhsa_system_sgpr_workgroup_id_x 1
.end_amdhsa_kernel
"""

def generate(opt):
    k1, k1v, k1l = gen_k1(opt)
    k2, k2v, k2l = gen_k2(opt)
    main = NAME + "_kernel"
    s = HDR
    s += f"; @launch kernel=bin_edges_kernel grid=({NCH+4},1,1) block=(640,1,1) lds={k1l}\n"
    s += f"; @launch kernel={main} grid=({NCH},1,1) block=(512,1,1) lds={k2l}\n"
    s += '.amdgcn_target "amdgcn-amd-amdhsa--gfx950"\n.text\n'
    for nm, body in (("bin_edges_kernel", k1), (main, k2)):
        s += f".globl {nm}\n.p2align 8\n.type {nm},@function\n{nm}:\n{body}s_endpgm\n"
    s += '.section .rodata,"a"\n.p2align 6\n' + desc("bin_edges_kernel", k1v) + ".p2align 6\n" + desc(main, k2v)
    return s

if __name__ == "__main__":
    opt = {}
    out = f"cdna_kernels/{NAME}.s"
    for x in sys.argv[1:]:
        if "=" in x:
            k, v = x.split("="); opt[k] = int(v)
        else: out = x
    open(out, "w").write(generate(opt))
    print("wrote", out)
```

```python
import sys

NAME = "standalone__edge_featured_mpnn_egc__graph"
N, E, D = 10000, 640000, 64
NCH, CH = 250, 2560
BN = 40
RSTR = CH * 4 + 128
OSTR = 1024 + 128
R_OFF, O_OFF, W_OFF = 0, 0x280000, 0x300000
WS_BYTES = 0x310000
NEG_LOG2E = 0xBFB8AA3B
assert NCH * RSTR <= O_OFF and O_OFF + 256 * OSTR <= W_OFF

class Asm:
    def __init__(self): self.l = []
    def __call__(self, s):
        for x in s.split("\n"):
            x = x.strip()
            if x: self.l.append(("" if x.endswith(":") else "    ") + x)
    def text(self): return "\n".join(self.l) + "\n"

def vr(b, n=1): return f"v{b}" if n == 1 else f"v[{b}:{b+n-1}]"

def dpp_scan(a, v, op="v_add_u32", pad="s_nop 1"):
    for sh in (1, 2, 4, 8):
        a(pad)
        a(f"{op}_dpp v{v}, v{v}, v{v} row_shr:{sh} row_mask:0xf bank_mask:0xf bound_ctrl:0")
    a(pad)
    a(f"{op}_dpp v{v}, v{v}, v{v} row_bcast:15 row_mask:0xa bank_mask:0xf")
    a(pad)
    a(f"{op}_dpp v{v}, v{v}, v{v} row_bcast:31 row_mask:0xc bank_mask:0xf")

def dpp_scan2(a, v1, op1, v2, op2):
    for mod in ("row_shr:1 row_mask:0xf bank_mask:0xf bound_ctrl:0", "row_shr:2 row_mask:0xf bank_mask:0xf bound_ctrl:0",
                "row_shr:4 row_mask:0xf bank_mask:0xf bound_ctrl:0", "row_shr:8 row_mask:0xf bank_mask:0xf bound_ctrl:0",
                "row_bcast:15 row_mask:0xa bank_mask:0xf", "row_bcast:31 row_mask:0xc bank_mask:0xf"):
        a("s_nop 0")
        a(f"{op1}_dpp v{v1}, v{v1}, v{v1} {mod}")
        a(f"{op2}_dpp v{v2}, v{v2}, v{v2} {mod}")

STAMP_OFF = 0x400000
def stamp(a, opt, idx):
    if opt.get("STAMP"):
        a(f"s_memrealtime s[{70+2*idx}:{71+2*idx}]")
def stamp_out(a, opt, n, kidx, wsreg, tmpv):
    if not opt.get("STAMP"): return
    a("s_waitcnt lgkmcnt(0)")
    a("s_mov_b64 exec, 1")
    a(f"v_lshrrev_b32 v{tmpv}, 6, v0")
    a(f"s_lshl_b32 s68, s2, 4")
    a(f"v_add_u32 v{tmpv}, s68, v{tmpv}")
    a(f"v_lshlrev_b32 v{tmpv}, 6, v{tmpv}")
    a(f"v_add_u32 v{tmpv}, {STAMP_OFF + kidx*0x40000}, v{tmpv}")
    for i in range(n):
        a(f"v_mov_b32 v{tmpv+1}, s{70+2*i}")
        a(f"global_store_dword v{tmpv}, v{tmpv+1}, s[{wsreg}:{wsreg+1}] offset:{4*i}")

def gen_k1(opt):
    a = Asm()
    ST = {0: "", 1: "sc1", 2: "nt", 3: "sc0 sc1"}[opt.get("K1ST", 0)]
    STR = {0: "", 1: "sc1", 2: "nt", 3: "sc0 sc1", 4: "sc1 nt"}[opt.get("K1STR", 1)]
    stamp(a, opt, 0)
    a(f"""
    s_cmp_ge_u32 s2, 256
    s_cbranch_scc1 K1_END
    s_load_dwordx4 s[4:7], s[0:1], 16
    s_load_dwordx2 s[8:9], s[0:1], 72
    s_load_dwordx2 s[24:25], s[0:1], 0
    s_and_b32 s26, s2, 7
    s_lshl_b32 s26, s26, 5
    s_lshr_b32 s27, s2, 3
    s_add_u32 s26, s26, s27
    s_lshl_b32 s26, s26, 2
    s_add_u32 s26, s26, {O_OFF}
    s_mul_i32 s27, s27, {313*128}
    v_lshlrev_b32 v30, 7, v0
    v_add_u32 v30, s27, v30
    v_min_u32 v30, {N*128-128}, v30
    s_cmp_ge_u32 s2, {NCH}
    s_cbranch_scc1 K1_W
    v_lshlrev_b32 v1, 4, v0
    s_mul_i32 s3, s2, {CH*4}
    v_add_u32 v2, s3, v1
    v_lshlrev_b32 v3, 2, v0
    v_mov_b32 v4, 0
    ds_write_b32 v3, v4
    s_waitcnt lgkmcnt(0)
    global_load_dwordx4 v[8:11], v2, s[6:7]
    global_load_dwordx4 v[12:15], v2, s[4:5]
    v_readfirstlane_b32 s12, v0
    s_mul_i32 s3, s2, {RSTR}
    v_add_u32 v2, s3, v1
    """)
    if opt.get("XPF", 0):
        a(f"""
        s_cmp_ge_u32 s12, 320
        s_cbranch_scc1 K1_NOPF
        s_barrier
        global_load_dword v31, v30, s[24:25]
        s_waitcnt vmcnt(2)
        s_branch K1_PFD
        K1_NOPF:
        s_barrier
        s_waitcnt vmcnt(1)
        K1_PFD:
        """)
    else:
        a("s_barrier\ns_waitcnt vmcnt(1)")
    if opt.get("CPF", 0):
        a(f"""
        s_cmp_ge_u32 s2, 8
        s_cbranch_scc1 K1_NOC
        s_cmp_ge_u32 s12, 128
        s_cbranch_scc1 K1_NOC
        s_getpc_b64 s[28:29]
        K1_PC:
        s_add_u32 s28, s28, {NAME}_kernel - K1_PC
        s_addc_u32 s29, s29, 0
        v_lshlrev_b32 v30, 7, v0
        v_min_u32 v30, K2_END - {NAME}_kernel, v30
        s_waitcnt vmcnt(0)
        global_load_dword v31, v30, s[28:29]
        s_waitcnt vmcnt(0)
        K1_NOC:
        """)
    a(f"""
    s_mov_b32 s10, 214749
    s_movk_i32 s11, 625
    v_mov_b32 v5, 1
    v_lshlrev_b32 v6, 16, v0
    v_and_b32 v7, 63, v0
    v_lshlrev_b32 v7, 4, v7
    """)
    stamp(a, opt, 1)
    for i in range(4):
        a(f"""
        v_mul_u32_u24 v{16+i}, s10, v{8+i}
        v_lshrrev_b32 v{16+i}, 23, v{16+i}
        v_mad_u32_u24 v{20+i}, v{16+i}, s11, 15
        v_lshlrev_b32 v{16+i}, 2, v{16+i}
        ds_add_rtn_u32 v{24+i}, v{16+i}, v5
        """)
    for i in range(4):
        a(f"v_lshrrev_b32 v{20+i}, 4, v{20+i}")
        a(f"v_sub_u32 v{20+i}, v{8+i}, v{20+i}")
        a(f"v_lshl_or_b32 v{20+i}, v{20+i}, 26, v6")
        if i: a(f"v_add_u32 v{20+i}, {i<<14}, v{20+i}")
    if opt.get("XPF", 0):
        a(f"""
        s_cmp_ge_u32 s12, 320
        s_cbranch_scc0 K1_W1
        s_waitcnt vmcnt(0)
        K1_W1:
        s_waitcnt vmcnt(1)
        """)
    else:
        a("s_waitcnt vmcnt(0)")
    for i in range(4):
        a(f"v_or_b32 v{20+i}, v{12+i}, v{20+i}")
    a("""
    s_waitcnt lgkmcnt(0)
    s_barrier
    ds_read_b128 v[32:35], v7
    s_waitcnt lgkmcnt(0)
    v_add_u32 v41, v32, v33
    v_add_u32 v42, v41, v34
    v_add_u32 v43, v42, v35
    v_mov_b32 v48, v43
    """)
    dpp_scan(a, 48)
    a("""
    v_sub_u32 v52, v48, v43
    v_add_u32 v53, v52, v32
    v_add_u32 v54, v52, v41
    v_add_u32 v55, v52, v42
    ds_write_b128 v7, v[52:55] offset:2560
    """)
    for i in range(4):
        a(f"ds_read_b32 v{36+i}, v{16+i} offset:2560")
    a(f"""
    s_cmp_lg_u32 s12, 576
    s_cbranch_scc1 K1_NOO
    v_mul_u32_u24 v56, {OSTR//4}, v7
    v_add_u32 v56, s26, v56
    """)
    for k in range(4):
        a(f"v_lshl_or_b32 v{60+k}, v{32+k}, 16, v{52+k}")
        a(f"global_store_dword v56, v{60+k}, s[8:9] offset:{k*OSTR} {ST}")
    a(f"""
    K1_NOO:
    s_waitcnt lgkmcnt(0)
    """)
    for i in range(4):
        a(f"v_add_lshl_u32 v{36+i}, v{36+i}, v{24+i}, 2")
        a(f"ds_write_b32 v{36+i}, v{20+i} offset:4096")
    a(f"""
    s_waitcnt lgkmcnt(0)
    s_barrier
    ds_read_b128 v[32:35], v1 offset:4096
    s_waitcnt lgkmcnt(0)
    global_store_dwordx4 v2, v[32:35], s[8:9] {STR}
    s_cmp_lg_u32 s12, 576
    s_cbranch_scc1 K1_NOP
    s_mov_b32 exec_lo, 0
    s_mov_b32 exec_hi, 0xff000000
    global_store_dwordx4 v2, v[32:35], s[8:9] offset:128 {STR}
    K1_NOP:
    """)
    stamp(a, opt, 2)
    if opt.get("STAMP"): a("s_waitcnt vmcnt(0)")
    stamp(a, opt, 3)
    stamp_out(a, opt, 4, 0, 8, 40)
    a(f"""
    s_endpgm
    K1_W:
    s_load_dwordx4 s[12:15], s[0:1], 32
    s_load_dwordx2 s[16:17], s[0:1], 48
    v_lshrrev_b32 v1, 6, v0
    v_mul_u32_u24 v5, {OSTR}, v0
    v_readfirstlane_b32 s3, v1
    v_add_u32 v5, s26, v5
    v_mov_b32 v6, 0
    s_waitcnt lgkmcnt(0)
    s_cmp_ge_u32 s3, 4
    s_cbranch_scc1 K1_W0
    global_store_dword v5, v6, s[8:9] {ST}
    K1_W0:
    s_sub_u32 s10, s2, {NCH}
    s_mul_i32 s10, s10, 10
    s_add_u32 s10, s10, s3
    s_cmp_ge_u32 s10, 34
    s_cbranch_scc1 K1_END
    s_mov_b32 s18, s16
    s_mov_b32 s19, s17
    s_mov_b32 s22, 1.0
    s_cmp_ge_u32 s10, 10
    s_cbranch_scc1 K1_W2
    s_cmp_ge_u32 s10, 5
    s_cselect_b32 s21, 1, 0
    s_mul_i32 s20, s21, 5
    s_sub_u32 s20, s10, s20
    s_lshl_b32 s20, s20, 4
    s_add_u32 s20, s20, 64
    s_mov_b32 s22, {NEG_LOG2E:#x}
    s_branch K1_W3
    K1_W2:
    s_sub_u32 s23, s10, 10
    s_and_b32 s20, s23, 3
    s_lshl_b32 s20, s20, 4
    s_bfe_u32 s21, s23, 0x10002
    s_lshr_b32 s23, s23, 3
    s_cmp_eq_u32 s23, 0
    s_cselect_b32 s18, s14, s18
    s_cselect_b32 s19, s15, s19
    s_cmp_eq_u32 s23, 2
    s_cselect_b32 s18, s12, s18
    s_cselect_b32 s19, s13, s19
    K1_W3:
    s_lshl_b32 s20, s20, 7
    s_lshl_b32 s21, s21, 6
    s_add_u32 s20, s20, s21
    v_and_b32 v2, 31, v0
    v_bfe_u32 v3, v0, 5, 1
    v_lshlrev_b32 v2, 1, v2
    v_lshl_or_b32 v2, v3, 10, v2
    v_add_u32 v2, s20, v2
    """)
    for t in range(8):
        a(f"global_load_ushort v{8+t}, v2, s[18:19] offset:{128*t}")
    a(f"""
    v_and_b32 v4, 63, v0
    v_lshlrev_b32 v4, 4, v4
    s_lshl_b32 s10, s10, 10
    s_add_u32 s10, s10, {W_OFF}
    v_add_u32 v4, s10, v4
    s_waitcnt vmcnt(0)
    """)
    for t in range(8):
        a(f"v_lshlrev_b32 v{8+t}, 16, v{8+t}")
        a(f"v_mul_f32 v{8+t}, s22, v{8+t}")
    for q in range(4):
        a(f"v_cvt_pk_bf16_f32 v{16+q}, v{8+2*q}, v{9+2*q}")
    a(f"""
    global_store_dwordx4 v4, v[16:19], s[8:9] {ST}
    K1_END:
    """)
    return a.text(), 64, 14336

def gen_k2(opt):
    NB = 2
    LT = 96
    CAP = LT * 32
    SLOT = 4096
    CNT = 0
    ROW = 1024
    AGG = ROW + 512
    XLO = ROW + BN * 1024
    ELO = XLO + CAP * 4
    WIM = ELO + CAP * 4
    RING = WIM + 18 * 1024
    LDS = RING + 8 * NB * SLOT
    assert LDS <= 163840 and XLO % 256 == 0 and ELO % 256 == 0 and ELO // 256 < 256
    XB = RING + 16384
    DUMMY = 0x0400FFFF
    r = {}
    nxt = [1]
    def al(name, n=1, align=1):
        b = (nxt[0] + align - 1) // align * align
        r[name] = b; nxt[0] = b + n; return b
    for nm in ("EH","ER","PX","PE","PG","J8","EL","T0","T1","T2","T3","CNT","SEG","EB","ONE","LE","DUM"):
        al(nm)
    for nm in ("XA","XR","XL"): al(nm, 4, 4)
    al("GA", 4, 4); al("GR", 4, 4); al("EA", 8, 4); al("SUM", 8, 4)
    al("WZ", 40, 4); al("WH", 32, 4); al("Z", 32, 4); al("H", 32, 4); al("XF", 16, 4); al("EF", 8, 4)
    al("REC", 16, 4)
    NV = nxt[0]
    assert NV <= 256, NV
    V = lambda n, o=0: f"v{r[n]+o}"
    VR = lambda n, o, c: vr(r[n]+o, c)
    REC = r["REC"]; RA = r["Z"]; RK = r["Z"] + 16; RB = r["H"]; XV = r["XF"]
    sW, sRING, sK, sT, sU, sL, sRND, sNODE, s128, sBIG, sMSK, sNP, sFLG, sV = range(18, 32)
    sFIRST = 33
    SM = 34
    a = Asm()
    def mf(d, A, B, c): return f"v_mfma_f32_32x32x16_bf16 {d}, {A}, {B}, {c}"
    stamp(a, opt, 0)
    a(f"""
    s_load_dwordx2 s[12:13], s[0:1], 72
    s_load_dwordx4 s[28:31], s[0:1], 0
    s_load_dwordx2 s[16:17], s[0:1], 56
    s_cmp_ge_u32 s2, 256
    s_cbranch_scc1 K2_END
    s_and_b32 s{sT}, s2, 7
    s_lshl_b32 s{sT}, s{sT}, 5
    s_lshr_b32 s{sU}, s2, 3
    s_add_u32 s3, s{sT}, s{sU}
    s_mul_i32 s{sT}, s3, {OSTR}
    s_add_u32 s{sT}, s{sT}, {O_OFF}
    v_lshrrev_b32 {V('SEG')}, 1, v0
    v_lshlrev_b32 {V('T2')}, 2, {V('SEG')}
    v_and_b32 {V('T1')}, 63, v0
    v_lshlrev_b32 {V('ER')}, 4, {V('T1')}
    s_mov_b32 s14, {WS_BYTES}
    s_mov_b32 s15, 0x20000
    v_lshrrev_b32 {V('T0')}, 6, v0
    s_mov_b32 s6, {N*128}
    v_readfirstlane_b32 s{sW}, {V('T0')}
    s_mov_b32 s7, 0x20000
    s_mov_b32 s10, {E*32}
    s_mov_b32 s11, 0x20000
    s_movk_i32 s{s128}, 128
    s_mov_b32 s{sBIG}, 0x80000000
    s_mul_i32 s{sNODE}, s3, 625
    s_add_u32 s{sNODE}, s{sNODE}, 15
    s_add_u32 s32, s{sNODE}, 625
    s_lshr_b32 s{sNODE}, s{sNODE}, 4
    s_lshr_b32 s32, s32, 4
    s_sub_u32 s32, s32, s{sNODE}
    s_lshl_b32 s32, s32, 3
    s_lshl_b32 s{sNODE}, s{sNODE}, 7
    v_lshrrev_b32 {V('T0')}, 3, {V('T1')}
    v_and_b32 {V('T3')}, 4, {V('T0')}
    v_and_b32 {V('XA',0)}, 7, {V('T1')}
    v_xor_b32 {V('XA',0)}, {V('XA',0)}, {V('T3')}
    v_lshlrev_b32 {V('XA',0)}, 4, {V('XA',0)}
    s_and_b32 s{sU}, s{sW}, 3
    s_lshl_b32 s{sK}, s{sU}, 4
    v_and_b32 {V('T0')}, 3, {V('T0')}
    v_lshl_add_u32 {V('T0')}, {V('T0')}, 3, {V('T3')}
    v_xor_b32 {V('T3')}, s{sK}, {V('XA',0)}
    v_lshl_add_u32 {V('T3')}, {V('T0')}, 7, {V('T3')}
    s_lshr_b32 s{sK}, s{sW}, 2
    s_lshl_b32 s{sK}, s{sK}, 5
    s_add_u32 s{sU}, s{sU}, s{sK}
    s_lshl_b32 s{sU}, s{sU}, 7
    s_add_u32 s{sU}, s{sU}, s{sNODE}
    s_waitcnt lgkmcnt(0)
    buffer_load_dword {V('CNT')}, {V('T2')}, s[12:15], s{sT} offen
    buffer_load_dwordx4 {VR('XL',0,4)}, {V('ER')}, s[12:15], s{sT} offen
    s_mov_b32 s4, s28
    s_mov_b32 s5, s29
    s_mov_b32 s8, s30
    s_mov_b32 s9, s31
    s_lshl_b32 s{sT}, s{sW}, 10
    s_add_u32 m0, s{sT}, {XB}
    s_mul_i32 s{sRING}, s{sW}, {NB*SLOT}
    buffer_load_dwordx4 {V('T3')}, s[4:7], s{sU} offen lds
    """)
    for lo, go in ((RING, 18*1024), (RING + 8192, 26*1024), (WIM, 0), (WIM + 8192, 8192)):
        a(f"""
        s_add_u32 m0, s{sT}, {lo}
        s_add_u32 s{sK}, s{sT}, {W_OFF + go}
        buffer_load_dwordx4 {V('ER')}, s[12:15], s{sK} offen lds
        """)
    a(f"""
    s_lshl_b32 s{sK}, s{sW}, 8
    s_add_u32 m0, s{sK}, {WIM + 16384}
    s_add_u32 s{sK}, s{sK}, {W_OFF + 16384}
    v_lshlrev_b32 {V('T3')}, 2, {V('T1')}
    buffer_load_dword {V('T3')}, s[12:15], s{sK} offen lds
    s_add_u32 s{sRING}, s{sRING}, {RING}
    v_and_b32 {V('T0')}, 31, {V('SEG')}
    v_lshrrev_b32 {V('T3')}, 5, {V('SEG')}
    v_lshl_or_b32 {V('T0')}, {V('T0')}, 3, {V('T3')}
    v_mul_u32_u24 {V('EB')}, {CH}, {V('T0')}
    v_mul_u32_u24 {V('SEG')}, {RSTR}, {V('T0')}
    v_and_b32 {V('LE')}, 1, v0
    v_lshl_add_u32 {V('SEG')}, {V('LE')}, 4, {V('SEG')}
    v_lshlrev_b32 {V('LE')}, 2, {V('LE')}
    """)
    def fill_lists():
        a(f"v_lshlrev_b32 {V('T0')}, 4, v0")
        for i in range(4): a(f"v_mov_b32 {V('Z',i)}, {DUMMY:#x}")
        for i in range(4): a(f"v_mov_b32 {V('Z',4+i)}, 0")
        a(f"v_and_b32 {V('T3')}, 0x3fc, {V('T0')}")
        for i in range(3):
            a(f"ds_write_b128 {V('T0')}, {VR('Z',0,4)} offset:{XLO+8192*i}")
        a(f"ds_write_b128 {V('T3')}, {VR('Z',4,4)} offset:{CNT}")
    fill_lists()
    for k in range(4): a(f"v_mov_b32 {V('GA',k)}, s{sBIG}")
    a(f"""
    s_waitcnt vmcnt(7)
    v_and_b32 {V('T0')}, 0xffff, {V('CNT')}
    v_lshrrev_b32 {V('CNT')}, 16, {V('CNT')}
    v_sub_u32 {V('CNT')}, {V('CNT')}, {V('LE')}
    v_lshl_add_u32 {V('SEG')}, {V('T0')}, 2, {V('SEG')}
    """)
    stamp(a, opt, 1)
    cm = ["vcc", "s[66:67]", "s[92:93]", "s[94:95]"]
    def issue_loads():
        for k in range(4): a(f"v_cmp_lt_i32 {cm[k]}, {8*k}, {V('CNT')}")
        for k in range(4):
            a(f"v_cndmask_b32 {V('GA',k)}, {V('GA',k)}, {V('SEG')}, {cm[k]}")
            a(f"buffer_load_dwordx4 {vr(REC+4*k,4)}, {V('GA',k)}, s[12:15], 0 offen offset:{32*k}")
    issue_loads()
    XPF = opt.get("XPF2", 1)
    a(f"""
    v_mov_b32 {V('ONE')}, 4
    v_xor_b32 {V('XA',1)}, 16, {V('XA',0)}
    v_xor_b32 {V('XA',2)}, 32, {V('XA',0)}
    v_xor_b32 {V('XA',3)}, 48, {V('XA',0)}
    v_and_b32 {V('T2')}, 31, v0
    v_bfe_u32 {V('EH')}, v0, 5, 1
    v_lshlrev_b32 {V('EH')}, 4, {V('EH')}
    v_lshlrev_b32 {V('J8')}, 3, {V('T2')}
    v_and_b32 {V('T0')}, 3, {V('T2')}
    v_lshrrev_b32 {V('T3')}, 3, {V('T2')}
    v_and_or_b32 {V('T3')}, {V('T2')}, 4, {V('T3')}
    v_lshl_add_u32 {V('EL')}, {V('T3')}, 2, {V('T0')}
    v_lshlrev_b32 {V('LE')}, 2, {V('EL')}
    v_lshl_add_u32 {V('T3')}, {V('T0')}, 3, {V('T3')}
    v_and_b32 {V('T0')}, 7, {V('T2')}
    v_lshlrev_b32 {V('T2')}, 7, {V('T3')}
    v_lshlrev_b32 {V('T0')}, 4, {V('T0')}
    v_xor_b32 {V('T0')}, {V('T0')}, {V('EH')}
    s_and_b32 s{sT}, s{sW}, 1
    s_lshl_b32 s{sT}, s{sT}, 12
    s_add_u32 s{sT}, s{sT}, {XB}
    s_lshr_b32 s{sU}, s{sW}, 1
    s_lshl_b32 s{sU}, s{sU}, 12
    s_add_u32 s{sU}, s{sU}, {RING}
    v_add_u32 {V('T2')}, s{sT}, {V('T2')}
    """)
    for ks in range(4):
        a(f"v_xor_b32 {V('XR',ks)}, {32*ks}, {V('T0')}")
        a(f"v_add_u32 {V('XR',ks)}, {V('XR',ks)}, {V('T2')}")
    a(f"""
    v_add_u32 {V('T2')}, s{sU}, {V('ER')}
    s_sub_u32 s{sV}, s{sRING}, s{sT}
    s_lshr_b32 s{sU}, s2, 3
    s_mul_i32 s{sU}, s{sU}, {320*128}
    v_lshlrev_b32 {V('PX')}, 7, v0
    s_cmp_ge_u32 s{sW}, 5
    s_cselect_b32 s{sU}, s{sBIG}, s{sU}
    s_waitcnt vmcnt(7) lgkmcnt(0)
    s_barrier
    """)
    if not opt.get("ST2"): stamp(a, opt, 8)
    if XPF: a(f"buffer_load_dword {V('DUM')}, {V('PX')}, s[4:7], s{sU} offen")
    for ks in range(4):
        a(f"ds_read_b128 {VR('WZ',4*ks,4)}, {V('XR',ks)}")
        a(f"ds_read_b128 {VR('WZ',16+4*ks,4)}, {V('T2')} offset:{1024*ks}")
    for i in range(4): a(f"v_lshrrev_b32 {V('XL',i)}, 16, {V('XL',i)}")
    a(f"""
    v_add3_u32 {V('T0')}, {V('XL',0)}, {V('XL',1)}, {V('XL',2)}
    v_max3_u32 {V('T2')}, {V('XL',0)}, {V('XL',1)}, {V('XL',2)}
    v_add_u32 {V('T0')}, {V('T0')}, {V('XL',3)}
    v_max_u32 {V('T2')}, {V('T2')}, {V('XL',3)}
    s_nop 0
    """)
    dpp_scan2(a, r['T0'], "v_add_u32", r['T2'], "v_max_u32")
    a(f"""
    s_mov_b32 s{sL}, 32
    v_readlane_b32 s{sT}, {V('T0')}, 63
    v_readlane_b32 s{sU}, {V('T2')}, 63
    """)
    for ks in range(4): a(f"v_add_u32 {V('XR',ks)}, s{sV}, {V('XR',ks)}")
    a(f"""
    s_mov_b32 s{sRND}, 1
    s_cmp_gt_u32 s{sT}, {CAP - 3*BN - 16}
    s_cselect_b32 s{sT}, 1, 0
    s_cmp_gt_u32 s{sU}, 32
    s_cselect_b32 s{sT}, 1, s{sT}
    s_add_u32 s{sU}, s{sU}, 7
    s_lshr_b32 s{sU}, s{sU}, 3
    s_cmp_lg_u32 s{sT}, 0
    s_cselect_b32 s{sL}, 8, s{sL}
    s_cselect_b32 s{sRND}, s{sU}, s{sRND}
    s_mov_b32 s{sFLG}, 0
    s_mov_b32 s{sFIRST}, 1
    s_mov_b32 s{sMSK}, 0xfc003fff
    s_branch K2_SORT
    K2_ROUND:
    s_barrier
    """)
    fill_lists()
    for k in range(4): a(f"v_mov_b32 {V('GA',k)}, s{sBIG}")
    a(f"""
    v_subrev_u32 {V('CNT')}, 8, {V('CNT')}
    v_add_u32 {V('SEG')}, 32, {V('SEG')}
    """)
    issue_loads()
    a(f"""
    s_waitcnt vmcnt(0) lgkmcnt(0)
    s_barrier
    K2_SORT:
    v_and_b32 {V('T3')}, 1, v0
    v_lshlrev_b32 {V('T3')}, 2, {V('T3')}
    v_sub_u32 {V('T3')}, s{sL}, {V('T3')}
    v_min_i32 {V('T1')}, {V('CNT')}, {V('T3')}
    v_lshrrev_b32 {V('T0')}, 2, {V('ER')}
    """)
    for n in range(16):
        a(f"v_cmp_lt_i32 s[{SM+2*n}:{SM+2*n+1}], {8*(n>>2)+(n&3)}, {V('T1')}")
    if not opt.get("ST2"): stamp(a, opt, 9)
    a(f"s_waitcnt vmcnt({XPF})")
    stamp(a, opt, 2)
    for k in range(4):
        if k:
            a(f"s_cmp_eq_u64 s[{SM+8*k}:{SM+8*k+1}], 0")
            a("s_cbranch_scc1 K2_P1D")
        for q in range(4):
            n = 4*k+q
            a(f"v_and_b32 v{XV+n}, s{sMSK}, v{REC+n}")
            a(f"v_lshrrev_b32 v{RA+n}, 24, v{XV+n}")
        for q in range(4):
            n = 4*k+q
            a(f"s_mov_b64 exec, s[{SM+2*n}:{SM+2*n+1}]")
            a(f"ds_add_rtn_u32 v{RK+n}, v{RA+n}, {V('ONE')} offset:{CNT}")
        a("s_mov_b64 exec, -1")
    a(f"""
    K2_P1D:
    s_waitcnt lgkmcnt(0)
    s_barrier
    ds_read_b32 {V('T2')}, {V('T0')} offset:{CNT}
    """)
    stamp(a, opt, 10)
    for n in range(8):
        a(f"v_bfe_u32 v{REC+n}, v{REC+n}, 14, 12")
    a(f"""
    s_waitcnt lgkmcnt(0)
    v_and_b32 {V('T1')}, -64, {V('T2')}
    v_and_b32 {V('T2')}, 63, {V('T2')}
    v_add_u32 {V('T2')}, 12, {V('T2')}
    v_and_b32 {V('T2')}, -16, {V('T2')}
    v_lshl_or_b32 {V('T2')}, {V('T2')}, 16, {V('T1')}
    v_mov_b32 {V('T3')}, {V('T2')}
    """)
    fillers = [f"v_bfe_u32 v{REC+n}, v{REC+n}, 14, 12" for n in range(8, 16)] + [f"v_add_u32 v{REC+n}, v{REC+n}, {V('EB')}" for n in range(16)]
    t3 = r['T3']
    for mod in ("row_shr:1 row_mask:0xf bank_mask:0xf bound_ctrl:0", "row_shr:2 row_mask:0xf bank_mask:0xf bound_ctrl:0",
                "row_shr:4 row_mask:0xf bank_mask:0xf bound_ctrl:0", "row_shr:8 row_mask:0xf bank_mask:0xf bound_ctrl:0",
                "row_bcast:15 row_mask:0xa bank_mask:0xf", "row_bcast:31 row_mask:0xc bank_mask:0xf"):
        a(fillers.pop(0)); a(fillers.pop(0))
        a(f"v_add_u32_dpp v{t3}, v{t3}, v{t3} {mod}")
    a(fillers.pop(0))
    if opt.get("ST2"): stamp(a, opt, 8)
    a(f"""
    v_readlane_b32 s{sT}, {V('T3')}, 63
    v_sub_u32 {V('T3')}, {V('T3')}, {V('T2')}
    s_and_b32 s{sU}, s{sT}, 0xffff
    s_add_u32 s{sU}, s{sU}, 127
    s_and_b32 s{sU}, s{sU}, -128
    v_lshrrev_b32 {V('T2')}, 16, {V('T3')}
    v_and_b32 {V('T3')}, 0xffff, {V('T3')}
    v_sub_u32 {V('T2')}, {V('T2')}, {V('T1')}
    v_lshl_or_b32 {V('T3')}, {V('T1')}, 16, {V('T3')}
    v_add_u32 {V('T2')}, s{sU}, {V('T2')}
    ds_write2_b32 {V('T0')}, {V('T3')}, {V('T2')} offset0:64 offset1:128
    """)
    for k in range(4):
        if k:
            a(f"s_cmp_eq_u64 s[{SM+8*k}:{SM+8*k+1}], 0")
            a("s_cbranch_scc1 K2_P2A")
        for q in range(4):
            n = 4*k+q
            a(f"ds_read2_b32 {vr(RB+2*n,2)}, v{RA+n} offset0:64 offset1:128")
    a("K2_P2A:")
    for x in fillers: a(x)
    a(f"""
    s_lshr_b32 s{sT}, s{sT}, 16
    s_add_u32 s{sT}, s{sT}, s{sU}
    s_add_u32 s{sT}, s{sT}, 127
    s_lshr_b32 s{sT}, s{sT}, 7
    s_sub_u32 s{sK}, 7, s{sW}
    s_lshr_b32 s{sU}, s{sU}, 7
    s_add_u32 s{sNP}, s{sU}, s{sK}
    s_add_u32 s{sK}, s{sT}, s{sK}
    s_waitcnt lgkmcnt(0)
    """)
    if opt.get("ST2"): stamp(a, opt, 9)
    for k in range(4):
        if k:
            a(f"s_cmp_eq_u64 s[{SM+8*k}:{SM+8*k+1}], 0")
            a("s_cbranch_scc1 K2_P2D")
        for q in range(4):
            n = 4*k+q
            a(f"v_cmp_lt_u32_sdwa {cm[q]}, v{RK+n}, v{RB+2*n} src0_sel:DWORD src1_sel:WORD_1")
        for q in range(4):
            n = 4*k+q
            a(f"v_cndmask_b32 v{RB+2*n}, v{RB+2*n+1}, v{RB+2*n}, {cm[q]}")
        for q in range(4):
            n = 4*k+q
            a(f"v_add_u32_sdwa v{RB+2*n}, v{RB+2*n}, v{RK+n} dst_sel:DWORD dst_unused:UNUSED_PAD src0_sel:WORD_0 src1_sel:DWORD")
        for q in range(4):
            n = 4*k+q
            a(f"s_mov_b64 exec, s[{SM+2*n}:{SM+2*n+1}]")
            a(f"ds_write2st64_b32 v{RB+2*n}, v{XV+n}, v{REC+n} offset0:{XLO//256} offset1:{ELO//256}")
        a("s_mov_b64 exec, -1")
    a(f"""
    K2_P2D:
    s_lshl_b32 s{sT}, s{sW}, 7
    v_bfe_u32 {V('PX')}, v0, 3, 3
    v_lshlrev_b32 {V('PX')}, 4, {V('PX')}
    s_add_u32 s{sU}, s{sT}, {XLO}
    v_add_u32 {V('PX')}, s{sU}, {V('PX')}
    v_lshl_add_u32 {V('PG')}, {V('EH')}, 2, s{sU}
    s_add_u32 s{sV}, s{sT}, {ELO}
    s_lshr_b32 s{sNP}, s{sNP}, 3
    s_lshr_b32 s{sK}, s{sK}, 3
    s_sub_i32 s{sT}, s{sK}, 2
    s_min_i32 s{sNP}, s{sNP}, s{sT}
    s_max_i32 s{sNP}, s{sNP}, 0
    v_add_u32 {V('PE')}, s{sV}, {V('LE')}
    """)
    if opt.get("ST2"): stamp(a, opt, 1)
    a(f"""
    s_waitcnt lgkmcnt(0)
    s_barrier
    """)
    stamp(a, opt, 3)
    uid = [0]
    lds = []
    def em(x):
        if isinstance(x, tuple):
            if x[0] == "need":
                n = len(lds) - 1 - max(i for i, t in enumerate(lds) if t == x[1])
                a(f"s_waitcnt lgkmcnt({min(n,15)})")
                return
            lds.append(x[1]); x = x[0]
        if opt.get("NODMA") and ("buffer_load" in x): return
        a(x)
    def list_read(off):
        return [(f"ds_read_b128 {VR('XL',0,4)}, {V('PX')} offset:{off*1024}", "list"), (f"ds_read_b32 {V('EL')}, {V('PE')} offset:{off*1024}", "list")]
    def pf_addr():
        return [f"v_lshl_add_u32 {V('EL')}, {V('EL')}, 5, {V('EH')}"] + \
               [f"v_mad_u32_u16 {V('XL',q)}, {V('XL',q)}, s{s128}, {V('XA',q)}" for q in range(4)]
    def e_load(slot): return f"buffer_load_dwordx4 {VR('EF',4*slot,4)}, {V('EL')}, s[8:11], 0 offen {['','nt','sc1','sc0 sc1','sc1 nt'][opt.get('EFL',0)]}"
    def x_m0(slot, q): return f"s_add_u32 m0, s{sRING}, {slot*SLOT+1024*q}"
    def x_load(q): return f"buffer_load_dwordx4 {V('XL',q)}, s[4:7], 0 offen lds"
    def loads_now(slot):
        o = [e_load(slot)]
        for q in range(4): o += [x_m0(slot, q), "s_nop 0", x_load(q)]
        return o
    def guarded(x):
        uid[0] += 1
        return [f"s_cbranch_vccnz K2_SK{uid[0]}", x, f"K2_SK{uid[0]}:"]
    def gl_read(gen):
        if gen: o = [(f"ds_read2_b32 {VR('GR',0,2)}, {V('PG')} offset0:0 offset1:4", "gl"), (f"ds_read2_b32 {VR('GR',2,2)}, {V('PG')} offset0:8 offset1:12", "gl")]
        else: o = [(f"ds_read_b32 {V('GR',0)}, {V('PG')}", "gl")]
        return o + [f"v_add_u32 {V('PG')}, 1024, {V('PG')}"]
    def gl_use(gen):
        n = 4 if gen else 1
        return [f"v_add_u32_sdwa {V('GA',g)}, {V('GR',g)}, {V('J8')} dst_sel:DWORD dst_unused:UNUSED_PAD src0_sel:WORD_1 src1_sel:DWORD" for g in range(n)] + \
               [(f"ds_read_b64 {VR('EA',2*g,2)}, {V('GA',g)} offset:{ROW}", "ea") for g in range(n)]
    def frag_reads(slot): return [(f"ds_read_b128 {VR('XF',4*ks,4)}, {V('XR',ks)} offset:{slot*SLOT}", f"xf{ks}") for ks in range(4)]
    def m_chain(nt, slot):
        z = VR('Z',16*nt,16); h = VR('H',16*nt,16)
        o = [mf(z, VR('EF',4*slot,4), VR('WZ',20*nt+16,4), "0")]
        o += [mf(z, VR('XF',4*ks,4), VR('WZ',20*nt+4*ks,4), z) for ks in range(4)]
        o += [mf(h, VR('XF',4*ks,4), VR('WH',16*nt+4*ks,4), "0" if ks == 0 else h) for ks in range(4)]
        return o
    PK = opt.get("PK", 1)
    def v_seq(nt, gen):
        z = r['Z'] + 16*nt; h = r['H'] + 16*nt; s = r['SUM']; ea = r['EA']
        o = [(f"v_exp_f32 v{z+i}, v{z+i}", 8) for i in range(16)]
        if nt == 0: o += [(("need", "ea"), 0)]
        pk = PK
        if pk: o += [(f"v_pk_fma_f32 {vr(z+i,2)}, {vr(z+i,2)}, {vr(ea + (2*(i>>2) if gen else 0),2)}, 1.0 op_sel:[0,{nt},0] op_sel_hi:[1,{nt},0]", 0) for i in range(0,16,2)]
        else: o += [(f"v_fma_f32 v{z+i}, v{z+i}, v{ea + (2*(i>>2) if gen else 0) + nt}, 1.0", 4) for i in range(16)]
        rc = [(f"v_rcp_f32 v{z+i}, v{z+i}", 8) for i in range(16)]
        if gen and pk:
            o += rc
            o += [(f"v_pk_mul_f32 {vr(s+2*g,2)}, {vr(z+4*g,2)}, {vr(h+4*g,2)}", 0) for g in range(4)]
            o += [(f"v_pk_fma_f32 {vr(s+2*g,2)}, {vr(z+4*g+2,2)}, {vr(h+4*g+2,2)}, {vr(s+2*g,2)}", 0) for g in range(4)]
            o += [(f"v_add_f32 v{s+2*g}, v{s+2*g}, v{s+2*g+1}", 4) for g in range(4)]
            o += [(f"v_cvt_f64_f32 {vr(s+2*g,2)}, v{s+2*g}", 4) for g in range(4)]
        elif gen:
            o += rc
            o += [(f"v_mul_f32 v{s+2*g}, v{z+4*g}, v{h+4*g}", 4) for g in range(4)]
            for k in (1, 2, 3): o += [(f"v_fmac_f32 v{s+2*g}, v{z+4*g+k}, v{h+4*g+k}", 4) for g in range(4)]
            o += [(f"v_cvt_f64_f32 {vr(s+2*g,2)}, v{s+2*g}", 4) for g in range(4)]
        elif pk:
            o += rc
            for i in range(8):
                d = vr(s + 2*(i & 1), 2)
                if i < 2: o.append((f"v_pk_mul_f32 {d}, {vr(z+2*i,2)}, {vr(h+2*i,2)}", 0))
                else: o.append((f"v_pk_fma_f32 {d}, {vr(z+2*i,2)}, {vr(h+2*i,2)}, {d}", 0))
            o.append((f"v_pk_add_f32 {vr(s,2)}, {vr(s,2)}, {vr(s+2,2)}", 0))
            o.append((f"v_add_f32 v{s}, v{s}, v{s+1}", 4))
            o.append((f"v_cvt_f64_f32 {vr(s,2)}, v{s}", 4))
        else:
            fm = [(f"v_mul_f32 v{s}, v{z}, v{h}", 4)] + [(f"v_fmac_f32 v{s}, v{z+i}, v{h+i}", 4) for i in range(1, 16)]
            o += rc[:2]
            for i in range(16):
                o.append(fm[i])
                if i + 2 < 16: o.append(rc[i+2])
            o.append((f"v_cvt_f64_f32 {vr(s,2)}, v{s}", 4))
        return o
    def flush(nt, gen): return [(f"ds_add_f64 {V('GA',g)}, {VR('SUM',2*g,2)} offset:{AGG+256*nt}", "fl") for g in range(4 if gen else 1)]
    def exact_xa(nt):
        uid[0] += 1
        z = r['Z'] + 16*nt
        a(f"s_cmp_eq_u32 s{sFLG}, 0\ns_cbranch_scc1 K2_FB{uid[0]}\ns_waitcnt lgkmcnt(0)")
        for g in range(4): a(f"ds_read_b32 {V('EA',2*g+nt)}, {V('GA',g)} offset:{ROW+256+4*nt}")
        a("s_waitcnt lgkmcnt(0)\ns_nop 7")
        for i in range(16): a(f"v_add_f32 v{z+i}, v{z+i}, {V('EA',2*(i>>2)+nt)}")
        for g in range(4): a(f"v_mov_b32 {V('EA',2*g+nt)}, 1.0")
        a(f"K2_FB{uid[0]}:")
    GAP = opt.get("GAP", 24)
    def weave(vs, ms, before, after, pk):
        POS = [0, 24, 48, 72, 96, 128, 152, 176, 200] if pk else [GAP * i for i in range(9)]
        cost = 0; mi = 0
        for ins, c in vs:
            while mi < len(ms) and cost >= POS[mi] and c > 0:
                for x in before.get(mi, []): em(x)
                if not opt.get("NOM"): a(ms[mi])
                for x in after.get(mi, []): em(x)
                mi += 1
            if isinstance(ins, tuple) or not opt.get("NOV"): em(ins)
            cost += c
        assert mi == len(ms)
    def iteration(u, gen):
        nslot = 1 - u
        g = guarded if gen else (lambda x: [x])
        lds.append("ea")
        if gen:
            a(f"s_cmp_lt_u32 s{sK}, 3\ns_cselect_b64 vcc, -1, 0")
            exact_xa(0)
        before = {i + 1: [x_m0(u, i)] for i in range(4)}
        after = {0: g(e_load(u))}
        for i in range(4): after[i + 1] = g(x_load(i))
        wt = ["s_waitcnt vmcnt(5)"]
        if gen:
            uid[0] += 1
            wt += [f"s_cbranch_vccz K2_WT{uid[0]}", "s_waitcnt vmcnt(0)", f"K2_WT{uid[0]}:"]
        after[8] = wt + frag_reads(nslot)
        weave(v_seq(0, gen), m_chain(1, u), before, after, PK)
        for x in flush(0, gen): em(x)
        if gen:
            a(f"s_cmp_eq_u32 s{sK}, 1\ns_cbranch_scc1 K2_LAST")
            exact_xa(1)
        before = {i + 1: [("need", f"xf{i}")] for i in range(4)}
        before[7] = [("need", "gl")] + pf_addr()
        after = {4: list_read(u + 3) + gl_read(gen)}
        weave(v_seq(1, gen), m_chain(0, nslot), before, after, PK)
        for x in flush(1, gen) + gl_use(gen): em(x)
        if u == 1:
            a(f"v_add_u32 {V('PX')}, 2048, {V('PX')}")
            a(f"v_add_u32 {V('PE')}, 2048, {V('PE')}")
    PRIO = opt.get("PRIO", 1)
    def weights():
        a(f"v_add_u32 {V('T3')}, {WIM}, {V('ER')}")
        for f in range(10): em((f"ds_read_b128 {VR('WZ',4*f,4)}, {V('T3')} offset:{f*1024}", "w"))
        for f in range(8): em((f"ds_read_b128 {VR('WH',4*f,4)}, {V('T3')} offset:{(10+f)*1024}", "w"))
    a(f"s_cmp_eq_u32 s{sK}, 0\ns_cbranch_scc1 K2_NOT0")
    for x in list_read(0) + gl_read(True) + [("need", "list")] + pf_addr(): em(x)
    for x in loads_now(0): a(x)
    for x in list_read(1): em(x)
    a(f"K2_NOT0:\ns_cmp_eq_u32 s{sFIRST}, 0\ns_cbranch_scc1 K2_NOX")
    d = VR('Z',0,16)
    for ks in range(4): a(mf(d, VR('WZ',4*ks,4), VR('WZ',16+4*ks,4), "0" if ks == 0 else d))
    a(f"""
    s_mov_b32 s{sFIRST}, 0
    s_nop 7
    s_and_b32 s{sT}, s{sW}, 1
    s_lshl_b32 s{sT}, s{sT}, 15
    v_lshl_add_u32 {V('T0')}, {V('EH')}, 8, {V('J8')}
    s_bfe_u32 s{sU}, s{sW}, 0x10001
    s_cmp_ge_u32 s{sW}, 4
    s_cbranch_scc1 K2_XU
    s_lshl_b32 s{sU}, s{sU}, 2
    s_add_u32 s{sT}, s{sT}, s{sU}
    v_add_u32 {V('T0')}, s{sT}, {V('T0')}
    s_mov_b32 s{sU}, {NEG_LOG2E:#x}
    v_mov_b32 {V('T3')}, 0
    s_bitcmp1_b32 s{sW}, 0
    """)
    for q in range(16):
        if q == 4: a("s_cbranch_scc1 K2_XAD")
        ro = (ROW + ((q>>2)*8+(q&3))*1024) // 256
        a(f"v_mul_f32 {V('Z',q)}, s{sU}, {V('Z',q)}")
        a(f"v_exp_f32 {V('H',16+q)}, {V('Z',q)}")
        a(f"v_and_b32 {V('T1')}, 0x7fffffff, {V('Z',q)}")
        a(f"v_max_u32 {V('T3')}, {V('T3')}, {V('T1')}")
        a(f"ds_write2st64_b32 {V('T0')}, {V('H',16+q)}, {V('Z',q)} offset0:{ro} offset1:{ro+1}")
    a(f"""
    K2_XAD:
    v_cmp_lt_u32 vcc, 0x42700000, {V('T3')}
    v_mov_b32 {V('T2')}, {CNT + 768}
    s_and_b64 exec, exec, vcc
    ds_write_b32 {V('T2')}, {V('ONE')}
    s_mov_b64 exec, -1
    s_branch K2_XD
    K2_XU:
    s_lshl_b32 s{sU}, s{sU}, 8
    s_add_u32 s{sT}, s{sT}, s{sU}
    v_add_u32 {V('T0')}, s{sT}, {V('T0')}
    s_bitcmp1_b32 s{sW}, 0
    """)
    for q in range(16):
        if q == 4: a("s_cbranch_scc1 K2_XD")
        b = r['H'] + 16 + 2*(q & 7)
        a(f"v_cvt_f64_f32 {vr(b,2)}, {V('Z',q)}")
        a(f"ds_write_b64 {V('T0')}, {vr(b,2)} offset:{AGG + ((q>>2)*8+(q&3))*1024}")
    a(f"""
    K2_XD:
    v_mov_b32 {V('T2')}, {CNT + 768}
    s_waitcnt lgkmcnt(0)
    s_barrier
    ds_read_b32 {V('T2')}, {V('T2')}
    s_waitcnt lgkmcnt(0)
    v_readfirstlane_b32 s{sFLG}, {V('T2')}
    K2_NOX:
    s_cmp_eq_u32 s{sK}, 0
    s_cbranch_scc1 K2_WEND
    s_cmp_lg_u32 s{sFLG}, 0
    s_cselect_b32 s{sNP}, 0, s{sNP}
    """)
    D1 = opt.get("D1", 1)
    if D1 == 1:
        weights()
        for x in [("need", "w")] + pf_addr(): em(x)
        a(f"s_cmp_lt_u32 s{sK}, 2\ns_cbranch_scc1 K2_F1")
        for x in loads_now(1): a(x)
    elif D1 == 2:
        weights()
        for x in [("need", "w")] + pf_addr(): em(x)
        a(f"s_waitcnt vmcnt(0)\ns_cmp_lt_u32 s{sK}, 2\ns_cbranch_scc1 K2_F1")
        for x in loads_now(1): a(x)
    else:
        for x in [("need", "list")] + pf_addr(): em(x)
        a(f"s_cmp_lt_u32 s{sK}, 2\ns_cbranch_scc1 K2_F0")
        for x in loads_now(1): a(x)
        a("K2_F0:")
        weights()
        a(f"s_cmp_lt_u32 s{sK}, 2\ns_cbranch_scc1 K2_F1")
    a("s_waitcnt vmcnt(5)\ns_branch K2_F2\nK2_F1:\ns_waitcnt vmcnt(0)\nK2_F2:")
    stamp(a, opt, 4)
    em(("need", "w"))
    for x in frag_reads(0) + list_read(2) + gl_use(True): em(x)
    if PRIO: a("s_setprio 3")
    ms = m_chain(0, 0)
    for i, x in enumerate(ms):
        if 1 <= i <= 4: em(("need", f"xf{i-1}"))
        a(x)
    for x in [("need", "list")] + pf_addr(): em(x)
    a("s_nop 3")
    if opt.get("STAMP"): a("s_memtime s[96:97]\ns_mov_b32 s100, s%d\ns_waitcnt lgkmcnt(0)" % sK)
    a(f"""
    s_sub_u32 s{sK}, s{sK}, s{sNP}
    s_cmp_eq_u32 s{sNP}, 0
    s_cbranch_scc1 K2_GENP
    K2_PURE:
    """)
    for u in range(2):
        iteration(u, False)
        a(f"s_sub_u32 s{sNP}, s{sNP}, 1")
        a(f"s_cmp_eq_u32 s{sNP}, 0")
        a("s_cbranch_scc1 K2_X1" if u == 0 else "s_cbranch_scc0 K2_PURE")
    def to_general():
        a(f"v_subrev_u32 {V('PG')}, 1024, {V('PG')}")
        for x in gl_read(True) + [("need", "gl")] + gl_use(True): em(x)
    to_general()
    a("K2_GENP:")
    if PRIO: a("s_setprio 1")
    a("K2_GEN0:")
    iteration(0, True)
    a(f"s_sub_u32 s{sK}, s{sK}, 1")
    a("K2_GEN1:")
    iteration(1, True)
    a(f"s_sub_u32 s{sK}, s{sK}, 1")
    a("s_branch K2_GEN0")
    a("K2_X1:")
    to_general()
    if PRIO: a("s_setprio 1")
    a("s_branch K2_GEN1")
    a("K2_LAST:")
    if PRIO: a("s_setprio 0")
    exact_xa(1)
    for x, c in v_seq(1, True): em(x)
    for x in flush(1, True): em(x)
    a("K2_WEND:")
    stamp(a, opt, 5)
    if opt.get("STAMP"): a("s_memtime s[98:99]")
    a(f"""
    s_waitcnt vmcnt(0) lgkmcnt(0)
    s_sub_u32 s{sRND}, s{sRND}, 1
    s_cmp_gt_i32 s{sRND}, 0
    s_cbranch_scc1 K2_ROUND
    v_lshrrev_b32 {V('T1')}, 3, v0
    v_and_b32 {V('T3')}, 7, v0
    v_lshlrev_b32 {V('T1')}, 10, {V('T1')}
    v_lshl_add_u32 {V('T1')}, {V('T3')}, 6, {V('T1')}
    v_lshlrev_b32 {V('T0')}, 4, v0
    v_add_u32 {V('T0')}, s{sNODE}, {V('T0')}
    v_cmp_gt_u32 vcc, s32, v0
    s_mov_b32 s{sT}, {NEG_LOG2E:#x}
    s_barrier
    """)
    stamp(a, opt, 6)
    a(f"""
    s_and_b64 exec, exec, vcc
    s_cbranch_scc0 K2_FIN
    ds_read_b128 {VR('Z',16,4)}, {V('T1')} offset:{AGG}
    ds_read_b128 {VR('Z',20,4)}, {V('T1')} offset:{AGG+16}
    ds_read_b128 {VR('Z',24,4)}, {V('T1')} offset:{AGG+32}
    ds_read_b128 {VR('Z',28,4)}, {V('T1')} offset:{AGG+48}
    s_waitcnt lgkmcnt(0)
    """)
    for i in range(8): a(f"v_cvt_f32_f64 {V('Z',i)}, {VR('Z',16+2*i,2)}")
    for i in range(8): a(f"v_mul_f32 {V('H',i)}, s{sT}, {V('Z',i)}")
    for i in range(8): a(f"v_exp_f32 {V('H',i)}, {V('H',i)}")
    for i in range(8): a(f"v_add_f32 {V('H',i)}, 1.0, {V('H',i)}")
    for i in range(8): a(f"v_rcp_f32 {V('H',i)}, {V('H',i)}")
    for i in range(8): a(f"v_mul_f32 {V('Z',i)}, {V('Z',i)}, {V('H',i)}")
    for q in range(4): a(f"v_cvt_pk_bf16_f32 {V('H',8+q)}, {V('Z',2*q)}, {V('Z',2*q+1)}")
    a(f"global_store_dwordx4 {V('T0')}, {VR('H',8,4)}, s[16:17]")
    a("K2_FIN:")
    if opt.get("STAMP"): a("s_waitcnt vmcnt(0)")
    stamp(a, opt, 7)
    stamp_out(a, opt, 16, 1, 12, r['T1'])
    a("K2_END:")
    return a.text(), NV, LDS

def gen_probe(opt):
    a = Asm()
    a(f"""
    s_cmp_ge_u32 s2, 1
    s_cbranch_scc1 PR_END
    s_load_dwordx2 s[4:5], s[0:1], 64
    s_load_dwordx2 s[8:9], s[0:1], 72
    v_lshlrev_b32 v1, 6, v0
    v_add_u32 v1, {STAMP_OFF}, v1
    v_mov_b32 v2, -1
    """)
    for i in range(12): a(f"v_mov_b32 v{10+i}, 0")
    a("s_waitcnt lgkmcnt(0)")
    a("s_mov_b32 s10, 0")
    a("""
    v_and_b32 v3, 15, v0
    v_cmp_gt_u32 s[12:13], 10, v3
    v_cmp_gt_u32 s[14:15], 8, v3
    PR_L:
    global_load_dwordx4 v[24:27], v1, s[8:9]
    v_add_u32 v4, 0x40000, v1
    global_load_dwordx4 v[28:31], v4, s[8:9]
    global_load_dwordx4 v[32:35], v4, s[8:9] offset:16
    s_waitcnt vmcnt(0)
    s_mov_b64 exec, s[12:13]
    v_min_u32 v2, v2, v24
    """)
    for i in range(4): a(f"v_max_u32 v{10+i}, v{10+i}, v{24+i}")
    a("s_mov_b64 exec, s[14:15]")
    for i in range(8): a(f"v_max_u32 v{14+i}, v{14+i}, v{28+i}")
    a("""
    s_mov_b64 exec, -1
    v_add_u32 v1, 4096, v1
    s_add_u32 s10, s10, 4
    s_cmp_lt_u32 s10, 248
    s_cbranch_scc1 PR_L
    """)
    a("s_mov_b32 s20, -1")
    for i in range(12): a(f"s_mov_b32 s{22+i}, 0")
    a("s_mov_b32 s10, 0")
    a("PR_R:")
    a("s_nop 4")
    a("v_readlane_b32 s11, v2, s10\ns_min_u32 s20, s20, s11")
    for i in range(12): a(f"v_readlane_b32 s11, v{10+i}, s10\ns_max_u32 s{22+i}, s{22+i}, s11")
    a("s_add_u32 s10, s10, 1\ns_cmp_lt_u32 s10, 64\ns_cbranch_scc1 PR_R")
    a("s_mov_b64 exec, 1\nv_mov_b32 v1, 0")
    for i in range(12):
        a(f"s_sub_u32 s{22+i}, s{22+i}, s20\nv_mov_b32 v2, s{22+i}\nglobal_store_dword v1, v2, s[4:5] offset:{4*i}")
    k = opt["PROBE"]
    if k >= 100: a("s_mov_b32 s21, 0")
    else: a(f"s_mul_i32 s21, s{22+k}, 10")
    a("""
    s_add_u32 s21, s21, 20000
    s_min_u32 s21, s21, 200000
    PR_S:
    s_memrealtime s[16:17]
    s_waitcnt lgkmcnt(0)
    s_sub_u32 s16, s16, s20
    s_cmp_lt_u32 s16, s21
    s_cbranch_scc1 PR_S
    PR_END:
    """)
    return a.text()

HDR = open("cdna_kernels/%s.s.ref" % NAME).read().split("; Override launch")[0]

def desc(name, nv, ns=102):
    acc = (nv + 3) // 4 * 4
    return f""".amdhsa_kernel {name}
  .amdhsa_next_free_vgpr {nv}
  .amdhsa_next_free_sgpr {ns}
  .amdhsa_accum_offset {acc}
  .amdhsa_group_segment_fixed_size 0
  .amdhsa_kernarg_size 80
  .amdhsa_user_sgpr_count 2
  .amdhsa_user_sgpr_kernarg_segment_ptr 1
  .amdhsa_system_sgpr_workgroup_id_x 1
.end_amdhsa_kernel
"""

def generate(opt):
    k1, k1v, k1l = gen_k1(opt)
    k2, k2v, k2l = gen_k2(opt)
    main = NAME + "_kernel"
    s = HDR
    for i in range(opt.get("PRE", 0)): s += "; @launch kernel=nop_kernel grid=(256,1,1) block=(64,1,1) lds=0\n"
    s += f"; @launch kernel=bin_edges_kernel grid=(256,1,1) block=(640,1,1) lds={k1l}\n"
    s += f"; @launch kernel={main} grid=(256,1,1) block=(512,1,1) lds={k2l}\n"
    for i in range(opt.get("POST", 0)): s += "; @launch kernel=nop_kernel grid=(256,1,1) block=(64,1,1) lds=0\n"
    if "PROBE" in opt: s += "; @launch kernel=probe_kernel grid=(1,1,1) block=(64,1,1) lds=0\n"
    s += '.amdgcn_target "amdgcn-amd-amdhsa--gfx950"\n.text\n'
    extra = opt.get("PRE", 0) + opt.get("POST", 0) > 0
    for nm, body in (("bin_edges_kernel", k1), (main, k2)) + ((("nop_kernel", ""),) if extra else ()) + ((("probe_kernel", gen_probe(opt)),) if "PROBE" in opt else ()):
        s += f".globl {nm}\n.p2align 8\n.type {nm},@function\n{nm}:\n{body}s_endpgm\n"
    s += '.section .rodata,"a"\n.p2align 6\n' + desc("bin_edges_kernel", k1v) + ".p2align 6\n" + desc(main, k2v) + (".p2align 6\n" + desc("nop_kernel", 8) if extra else "")
    if "PROBE" in opt: s += ".p2align 6\n" + desc("probe_kernel", 40)
    return s

if __name__ == "__main__":
    opt = {}
    out = f"cdna_kernels/{NAME}.s"
    for x in sys.argv[1:]:
        if "=" in x:
            k, v = x.split("="); opt[k] = int(v)
        else: out = x
    open(out, "w").write(generate(opt))
    print("wrote", out)
```

```python
import sys

NAME = "standalone__edge_featured_mpnn_egc__graph"
N, E = 10000, 640000
NCH, CH = 250, 2560
BN = 40
RSTR = 107 * 128
OSTR = 4096 + 128
O_OFF = 0x348000
T_OFF = 0x458000
WS_BYTES = 0x460000
NEG_LOG2E = 0xBFB8AA3B
assert NCH * RSTR <= O_OFF and O_OFF + 256 * OSTR <= T_OFF
STAMP_OFF = 0x480000
DPP = ("row_shr:1 row_mask:0xf bank_mask:0xf bound_ctrl:0", "row_shr:2 row_mask:0xf bank_mask:0xf bound_ctrl:0",
       "row_shr:4 row_mask:0xf bank_mask:0xf bound_ctrl:0", "row_shr:8 row_mask:0xf bank_mask:0xf bound_ctrl:0",
       "row_bcast:15 row_mask:0xa bank_mask:0xf", "row_bcast:31 row_mask:0xc bank_mask:0xf")

class Asm:
    def __init__(self): self.l = []
    def __call__(self, s):
        for x in s.split("\n"):
            x = x.strip()
            if x: self.l.append(("" if x.endswith(":") else "    ") + x)
    def text(self): return "\n".join(self.l) + "\n"

def vr(b, n=1): return f"v{b}" if n == 1 else f"v[{b}:{b+n-1}]"

def gen(opt):
    LT = 96
    CAP = LT * 32
    SLOT = 4096
    CNT = 0
    ROW = 1024
    AGG = ROW + 512
    XLO = ROW + BN * 1024
    ELO = XLO + CAP * 4
    WBV = ELO + CAP * 4
    RING = WBV + 144 * 128
    LDS = RING + 8 * 2 * SLOT
    assert LDS <= 163840 and XLO % 256 == 0 and ELO % 256 == 0 and ELO // 256 < 256
    C1, B1A, S1 = XLO, XLO + 1024, XLO + 2048
    DUMMY = 0x0400FFFF
    r = {}
    nxt = [1]
    def al(name, n=1, align=1):
        b = (nxt[0] + align - 1) // align * align
        r[name] = b; nxt[0] = b + n; return b
    for nm in ("EH","ER","PX","PE","PG","J8","EL","T0","T1","T2","T3","CNT","SEG","EB","ONE","LE","DUM","ZR","TR","XP","PO","PAR","T16","LO"):
        al(nm)
    for nm in ("XA","XR","XL","GA","GR"): al(nm, 4, 4)
    al("EA", 8, 4); al("SUM", 8, 4)
    al("WZ", 40, 4); al("WH", 32, 4); al("Z", 32, 4); al("H", 32, 4); al("XF", 16, 4); al("EF", 8, 4); al("REC", 24, 4)
    NV = nxt[0]
    assert NV <= 256, NV
    V = lambda n, o=0: f"v{r[n]+o}"
    VR = lambda n, o, c: vr(r[n]+o, c)
    NL = 6
    REC = r["REC"]; RA = r["Z"]; RK = r["H"]; RB = r["WZ"]; XV = r["XF"]
    rec = lambda n: REC + 4*(n//3) + n%3
    assert r["EF"] == r["XF"] + 16
    D_, S_, KA, RC, RK1, SC = r["H"], r["H"] + 8, r["H"] + 16, r["H"] + 24, r["XF"], r["REC"]
    XN, WN, BC = r["WH"], r["WZ"], r["WH"] + 16
    sBIN = 3
    sW, sRING, sK, sT, sU, sL, sRND, sNODE, s128, sBIG, sMSK, sNP, sFLG, sV, sNB8, sFIRST = range(18, 34)
    SM = 34
    sN0, sN1, sSPIN, sADV, sTG = 88, 89, 99, 3, 98
    sOW, sOR, sM0 = 64, 65, 59
    cm = ["vcc", "s[96:97]", "s[100:101]"]
    a = Asm()
    def stamp(i):
        if opt.get("STAMP"): a(f"s_memrealtime s[{70+2*i}:{71+2*i}]")
    def mf(d, A, B, c): return f"v_mfma_f32_32x32x16_bf16 {d}, {A}, {B}, {c}"
    def setexec(m): return f"s_mov_b32 exec_lo, {m & 0xffffffff:#x}\ns_mov_b32 exec_hi, {m >> 32:#x}"
    vm = []
    def vmem(x, tag): vm.append(tag); a(x)
    def vneed(tag): return len(vm) - 1 - max(i for i, t in enumerate(vm) if t == tag)
    BCP = opt.get("BCP", 3)
    def bc_loads():
        a(f"s_add_u32 m0, s{sM0}, {WBV + 80*128}\ns_movk_i32 s57, 0x2000\ns_movk_i32 s58, 0x4000")
        vmem(f"buffer_load_dwordx4 {vr(BC,4)}, {V('T16')}, s[60:63], s57 offen", "bc")
        vmem(f"buffer_load_dwordx4 {vr(BC+4,4)}, {V('T16')}, s[60:63], s58 offen", "bc")
        vmem(f"global_load_lds_dwordx4 {V('T16')}, s[46:47]", "v")
    XE = opt.get("XE", 8)
    def xpf(lo, hi, dst):
        a(setexec(((1 << hi) - 1) ^ ((1 << lo) - 1)))
        vmem(f"buffer_load_dword {dst}, {V('XP')}, s[4:7], 0 offen", "xpf")
        a("s_mov_b64 exec, -1")
    def tr(dst, addr, off):
        for hf in range(2): a(f"ds_read_b64_tr_b16 {vr(dst+2*hf,2)}, {addr} offset:{off + 512*hf}")

    stamp(0)
    a(f"""
    s_load_dwordx16 s[36:51], s[0:1], 0
    s_load_dwordx4 s[52:55], s[0:1], 64
    v_readfirstlane_b32 s{sW}, v0
    s_getpc_b64 s[56:57]
    F_PC0:
    s_lshr_b32 s{sU}, s2, 3
    s_lshl_b32 s{sK}, s{sU}, 9
    s_add_u32 s{sK}, s{sK}, s{sW}
    s_and_b32 s{sK}, s{sK}, 0x3fff
    """)
    if opt.get("CV", 1):
        a(f"""
        s_min_u32 s{sT}, s{sK}, K_END - F_PC0
        v_mov_b32 {V('T1')}, s{sT}
        s_mov_b64 exec, 1
        global_load_dword {V('EA',3)}, {V('T1')}, s[56:57]
        s_mov_b64 exec, -1
        """)
    else:
        a(f"s_min_u32 s{sT}, s{sK}, K_END - F_PC0\ns_load_dword s58, s[56:57], s{sT}")
    a(f"""
    s_cmp_ge_u32 s2, 256
    s_cbranch_scc1 K_END
    v_lshlrev_b32 {V('T16')}, 4, v0
    s_min_u32 s{sV}, s2, {NCH-1}
    s_mul_i32 s{sV}, s{sV}, {CH*4}
    v_add_u32 {V('PX')}, s{sV}, {V('T16')}
    s_add_u32 s{sV}, s{sV}, 8192
    v_lshl_add_u32 {V('PE')}, v0, 2, s{sV}
    """)
    for i in range(4): a(f"v_mov_b32 {V('Z',4+i)}, 0")
    a(f"""
    v_and_b32 {V('T3')}, 0x3f0, {V('T16')}
    ds_write_b128 {V('T3')}, {VR('Z',4,4)} offset:{C1}
    ds_write_b128 {V('T3')}, {VR('Z',4,4)} offset:{CNT}
    s_lshr_b32 s{sW}, s{sW}, 6
    s_mov_b32 s{sT}, {T_OFF}
    s_and_b32 s{sL}, s{sK}, 0x7ff
    s_add_u32 s{sL}, s{sL}, 0x4000
    s_and_b32 s{sNP}, s{sK}, 0x1fff
    s_waitcnt lgkmcnt(0)
    """)
    P11 = opt.get("P11", 0)
    if P11 == 1: stamp(11)
    vmem(f"global_load_dwordx4 {vr(D_,4)}, {V('PX')}, s[42:43]", "dst")
    vmem(f"global_load_dword v{D_+4}, {V('PE')}, s[42:43]", "dst")
    def src_loads():
        vmem(f"global_load_dwordx4 {vr(S_,4)}, {V('PX')}, s[40:41]", "src")
        vmem(f"global_load_dword v{S_+4}, {V('PE')}, s[40:41]", "src")
    SRC = opt.get("SRC", 1)
    if SRC == 0: src_loads()
    a(f"""
    s_load_dword s{sN0}, s[54:55], s{sT}
    """)
    if opt.get("WPF", 0):
        a(f"""
        s_load_dword s56, s[48:49], s{sK}
        s_load_dword s57, s[44:45], s{sNP}
        s_load_dword s58, s[46:47], s{sNP}
        s_load_dword s66, s[48:49], s{sL}
        """)
    a(f"""
    s_and_b32 s{sT}, s2, 7
    s_lshl_b32 s{sT}, s{sT}, 5
    s_add_u32 s{sBIN}, s{sT}, s{sU}
    s_mul_i32 s{sNODE}, s{sBIN}, 625
    s_add_u32 s{sNODE}, s{sNODE}, 15
    s_add_u32 s{sNB8}, s{sNODE}, 625
    s_lshr_b32 s{sNODE}, s{sNODE}, 4
    s_lshr_b32 s{sNB8}, s{sNB8}, 4
    s_sub_u32 s{sNB8}, s{sNB8}, s{sNODE}
    s_lshl_b32 s{sNODE}, s{sNODE}, 7
    s_mov_b32 s4, s36
    s_mov_b32 s5, s37
    s_mov_b32 s6, {N*128}
    s_mov_b32 s7, 0x20000
    s_barrier
    """)
    if P11 == 2: stamp(11)
    if SRC == 1: src_loads()
    a(f"""
    v_bfe_u32 {V('EH')}, v0, 5, 1
    v_and_b32 {V('T2')}, 31, v0
    v_lshlrev_b32 {V('EH')}, 4, {V('EH')}
    v_min_u32 {V('T2')}, 9, {V('T2')}
    v_lshl_add_u32 {V('EL')}, {V('T2')}, 7, {V('EH')}
    s_lshr_b32 s{sNP}, s{sW}, 1
    s_mul_i32 s{sV}, s{sNP}, {10*128}
    s_add_u32 s{sV}, s{sV}, s{sNODE}
    """)
    XNP = opt.get("XNP", 1)
    def xn_loads():
        a(setexec(0x000011ff000011ff))
        for ks in range(4): vmem(f"buffer_load_dwordx4 {vr(XN+4*ks,4)}, {V('EL')}, s[4:7], s{sV} offen offset:{32*ks}", "xn")
        a("s_mov_b64 exec, -1")
    if XNP == 0: xn_loads()
    if opt.get("TCH", 1):
        a(f"""
        s_mul_i32 s{sT}, s{sW}, {5*128}
        s_add_u32 s{sT}, s{sT}, s{sNODE}
        v_lshlrev_b32 {V('T1')}, 7, {V('T2')}
        s_lshl_b32 s{sK}, s{sK}, 1
        s_and_b32 s58, s{sK}, 0x1fff
        s_cmp_lt_u32 s{sK}, 0x6000
        s_cselect_b64 s[56:57], s[46:47], s[44:45]
        s_cmp_lt_u32 s{sK}, 0x4000
        s_cselect_b64 s[56:57], s[48:49], s[56:57]
        s_cselect_b32 s{sK}, s{sK}, s58
        s_cselect_b32 s{sL}, s{sL}, s58
        v_mov_b32 {V('T3')}, s{sK}
        v_writelane_b32 {V('T3')}, s{sL}, 1
        s_mov_b64 exec, 31
        """)
        vmem(f"buffer_load_dword {V('EA',4)}, {V('T1')}, s[4:7], s{sT} offen", "tch")
        vmem(f"global_load_dword {V('EA',5)}, {V('T3')}, s[56:57]", "tch")
        a("s_mov_b64 exec, -1")
    a(f"""
    v_and_b32 {V('T1')}, 63, v0
    v_mov_b32 {V('ZR')}, 0
    s_mov_b32 s12, s54
    s_mov_b32 s13, s55
    s_mov_b32 s14, {WS_BYTES}
    s_mov_b32 s15, 0x20000
    s_mov_b32 s{sBIG}, 0x80000000
    s_mul_i32 s{sOW}, s2, {OSTR}
    s_add_u32 s{sOW}, s{sOW}, {O_OFF}
    s_cmp_ge_u32 s{sW}, 4
    s_cselect_b32 s{sOW}, s{sBIG}, s{sOW}
    """)
    if opt.get("OPF", 0): vmem(f"buffer_store_dwordx4 {VR('Z',4,4)}, {V('T16')}, s[12:15], s{sOW} offen sc1", "opf")
    a(f"""
    s_mul_i32 s{sFLG}, s2, {RSTR}
    s_cmp_ge_u32 s2, {NCH}
    s_cselect_b32 s{sFLG}, s{sBIG}, s{sFLG}
    s_add_u32 s{sRND}, s{sFLG}, 8192
    v_cmp_gt_u32 vcc, 344, v0
    v_mov_b32 {V('PG')}, 0x40000000
    s_nop 0
    v_cndmask_b32 {V('PG')}, {V('PG')}, {V('T16')}, vcc
    """)
    if opt.get("RPF", 0):
        vmem(f"buffer_store_dwordx4 {VR('Z',4,4)}, {V('T16')}, s[12:15], s{sFLG} offen sc1", "opf")
        vmem(f"buffer_store_dwordx4 {VR('Z',4,4)}, {V('PG')}, s[12:15], s{sRND} offen sc1", "opf")
    a(f"""
    s_mov_b32 s8, s38
    s_mov_b32 s9, s39
    s_mov_b32 s10, {E*32}
    s_mov_b32 s11, 0x20000
    s_mov_b32 s16, s50
    s_mov_b32 s17, s51
    s_mov_b32 s60, s48
    s_mov_b32 s61, s49
    s_mov_b32 s62, {144*128}
    s_mov_b32 s63, 0x20000
    s_lshl_b32 s{sOR}, s{sBIN}, 4
    s_add_u32 s{sOR}, s{sOR}, {O_OFF}
    v_lshlrev_b32 {V('ER')}, 4, {V('T1')}
    s_movk_i32 s{s128}, 128
    s_lshl_b32 s{sNB8}, s{sNB8}, 3
    s_lshl_b32 s{sU}, s{sU}, 3
    s_add_u32 s{sU}, s{sU}, s{sW}
    s_mul_i32 s{sU}, s{sU}, {40*128}
    v_lshl_add_u32 {V('XP')}, {V('ER')}, 3, s{sU}
    s_lshl_b32 s{sM0}, s{sW}, 10
    s_lshl_b32 s{sRING}, s{sW}, 13
    s_add_u32 s{sRING}, s{sRING}, {RING}
    v_and_b32 {V('T2')}, 7, v0
    v_lshlrev_b32 {V('T2')}, 4, {V('T2')}
    v_lshlrev_b32 {V('T3')}, 2, {V('EH')}
    v_xor_b32 {V('XA',0)}, {V('T2')}, {V('T3')}
    v_xor_b32 {V('XA',1)}, 16, {V('XA',0)}
    v_xor_b32 {V('XA',2)}, 32, {V('XA',0)}
    v_xor_b32 {V('XA',3)}, 48, {V('XA',0)}
    ; XF read offsets: LDS row 8*(i&3) + g; slot = (2ks+h) ^ (i&7)
    v_xor_b32 {V('T0')}, {V('T2')}, {V('EH')}
    v_and_b32 {V('T2')}, 31, v0
    v_lshlrev_b32 {V('J8')}, 3, {V('T2')}
    v_and_b32 {V('T1')}, 3, v0
    v_lshrrev_b32 {V('T3')}, 3, {V('T2')}
    v_and_or_b32 {V('T3')}, v0, 4, {V('T3')}
    v_lshl_add_u32 {V('LE')}, {V('T3')}, 2, {V('T1')}
    v_lshlrev_b32 {V('LE')}, 2, {V('LE')}
    v_lshl_add_u32 {V('T3')}, {V('T1')}, 3, {V('T3')}
    v_lshl_add_u32 {V('T3')}, {V('T3')}, 7, s{sRING}
    """)
    for ks in range(4):
        a(f"v_xor_b32 {V('XR',ks)}, {32*ks}, {V('T0')}")
        a(f"v_add_u32 {V('XR',ks)}, {V('XR',ks)}, {V('T3')}")
    a(f"""
    v_bfe_u32 {V('T3')}, v0, 2, 2
    v_lshlrev_b32 {V('T3')}, 7, {V('T3')}
    v_lshl_add_u32 {V('T3')}, {V('EH')}, 6, {V('T3')}
    v_lshl_add_u32 {V('T3')}, {V('T1')}, 3, {V('T3')}
    v_and_b32 {V('T2')}, 16, v0
    v_lshl_add_u32 {V('T3')}, {V('T2')}, 1, {V('T3')}
    v_add_u32 {V('TR')}, {WBV}, {V('T3')}
    """)
    if opt.get("CMAP", 0): a(f"v_bfe_u32 {V('T1')}, v0, 1, 5\nv_lshl_add_u32 {V('T1')}, {V('T1')}, 3, s{sW}")
    else: a(f"v_lshrrev_b32 {V('T1')}, 1, v0")
    a(f"""
    v_and_b32 {V('PAR')}, 1, v0
    v_mul_u32_u24 {V('SEG')}, {RSTR}, {V('T1')}
    v_mul_u32_u24 {V('PO')}, {OSTR}, {V('T1')}
    v_mul_u32_u24 {V('EB')}, {CH*32}, {V('T1')}
    v_lshl_add_u32 {V('SEG')}, {V('PAR')}, 4, {V('SEG')}
    v_lshl_add_u32 {V('PO')}, {V('PAR')}, 3, {V('PO')}
    v_mul_u32_u24 {V('PAR')}, 3, {V('PAR')}
    v_mov_b32 {V('ONE')}, 4
    s_mov_b32 s{sK}, 214749
    s_movk_i32 s{sL}, 625
    v_lshlrev_b32 {V('T2')}, 16, v0
    v_lshlrev_b32 {V('T3')}, 14, v0
    v_add_u32 {V('T3')}, {2048<<14:#x}, {V('T3')}
    """)
    SL = opt.get("SL", 2)
    def au_loads():
        vmem(f"global_load_lds_dwordx4 {V('T16')}, s[48:49]", "au")
        a(f"s_add_u32 m0, s{sM0}, {RING + 8192}")
        a("s_nop 0")
        vmem(f"global_load_lds_dwordx4 {V('T16')}, s[44:45]", "au")
        if SL:
            a(f"s_add_u32 m0, s{sM0}, {RING + 16384}\ns_cmp_lt_u32 s{sW}, 5\ns_cselect_b32 s{sV}, s{sNODE}, s{sBIG}")
            vmem(f"buffer_load_dwordx4 {V('T16')}, s[4:7], s{sV} offen lds", "au")
    if BCP == 4: bc_loads()
    a(f"s_add_u32 m0, s{sM0}, {RING}")
    if SL == 3:
        a("s_nop 0")
        au_loads()
    if P11 == 4: stamp(11)
    a(f"s_waitcnt vmcnt({vneed('dst')})")
    if P11 == 0: stamp(11)
    if SRC == 2: src_loads()
    for i in range(5):
        a(f"""
        v_mul_u32_u24 v{KA+i}, s{sK}, v{D_+i}
        v_lshrrev_b32 v{KA+i}, 23, v{KA+i}
        v_mad_u32_u24 v{RC+i}, v{KA+i}, s{sL}, 15
        v_lshlrev_b32 v{KA+i}, 2, v{KA+i}
        ds_add_rtn_u32 v{RK1+i}, v{KA+i}, {V('ONE')} offset:{C1}
        """)
    if SL in (0, 2): au_loads()
    a(f"""
    s_waitcnt lgkmcnt(0)
    s_barrier
    ds_read_b128 {vr(SC,4)}, {V('ER')} offset:{C1}
    s_mul_i32 s{sN0}, s{sN0}, 0x9e3779b1
    s_add_u32 s{sN0}, s{sN0}, 0x7f4a7c15
    s_mul_i32 s{sN1}, s{sN0}, 0x85ebca6b
    """)
    if P11 == 3: stamp(11)
    if XNP == 1 and not SL: xn_loads()
    for i in range(5):
        a(f"v_lshrrev_b32 v{RC+i}, 4, v{RC+i}")
        a(f"v_sub_u32 v{RC+i}, v{D_+i}, v{RC+i}")
    a(f"""
    s_waitcnt lgkmcnt(0)
    v_add_u32 v{SC+5}, v{SC}, v{SC+1}
    v_add_u32 v{SC+6}, v{SC+5}, v{SC+2}
    v_add_u32 v{SC+7}, v{SC+6}, v{SC+3}
    v_mov_b32 v{SC+4}, v{SC+7}
    """)
    fl = [f"v_lshl_or_b32 v{RC+i}, v{RC+i}, 26, {V('T2') if i < 4 else V('T3')}" for i in range(5)]
    fl += [f"v_add_u32 v{RC+i}, {i<<14}, v{RC+i}" for i in range(1, 4)]
    fl += [f"v_lshlrev_b32 {V('T2')}, 2, v0", f"v_and_b32 {V('T2')}, 0x3fc, {V('T2')}", f"v_mov_b32 {V('SUM',3)}, s{sN1}", f"s_movk_i32 s{sT}, 21846"]
    for mod in DPP:
        a(fl.pop(0)); a(fl.pop(0))
        a(f"v_add_u32_dpp v{SC+4}, v{SC+4}, v{SC+4} {mod}")
    assert not fl
    a(f"""
    v_sub_u32 v{SC+8}, v{SC+4}, v{SC+7}
    v_add_u32 v{SC+9}, v{SC+8}, v{SC}
    v_add_u32 v{SC+10}, v{SC+8}, v{SC+5}
    v_add_u32 v{SC+11}, v{SC+8}, v{SC+6}
    ds_write_b128 {V('ER')}, {vr(SC+8,4)} offset:{B1A}
    """)
    a(f"ds_read2st64_b32 {VR('SUM',0,2)}, {V('T2')} offset0:{C1//256} offset1:{B1A//256}")
    for i in range(5): a(f"ds_read_b32 v{D_+i}, v{KA+i} offset:{B1A}")
    if BCP == 0: bc_loads()
    if XE: xpf(0, XE, V('EA',7))
    def publish():
        a(f"""
        v_lshl_or_b32 {V('SUM',0)}, {V('SUM',0)}, 16, {V('SUM',1)}
        s_cmp_lt_u32 s2, {NCH}
        s_cselect_b32 s{sU}, -1, 0
        v_mov_b32 {V('SUM',1)}, s{sN0}
        v_and_b32 {V('SUM',0)}, s{sU}, {V('SUM',0)}
        v_mov_b32 {V('SUM',2)}, {V('SUM',0)}
        """)
        vmem(f"buffer_store_dwordx4 {VR('SUM',0,4)}, {V('T16')}, s[12:15], s{sOW} offen sc1", "pub")
        stamp(8)
    OP = opt.get("OP", 0)
    if OP == 0:
        a("s_waitcnt lgkmcnt(5)")
        publish()
    a(f"s_waitcnt vmcnt({vneed('src')})")
    for i in range(5): a(f"v_or_b32 v{RC+i}, v{S_+i}, v{RC+i}")
    a("s_waitcnt lgkmcnt(0)")
    for i in range(5):
        a(f"v_add_u32 v{D_+i}, v{D_+i}, v{RK1+i}")
        a(f"v_mul_u32_u24 v{KA+i}, s{sT}, v{D_+i}")
        a(f"v_lshrrev_b32 v{KA+i}, 18, v{KA+i}")
        a(f"v_lshl_add_u32 v{D_+i}, v{KA+i}, 2, v{D_+i}")
        a(f"ds_write_b32 v{D_+i}, v{RC+i} offset:{S1}")
    if OP == 1: publish()
    a(f"""
    s_waitcnt lgkmcnt(0)
    s_barrier
    ds_read_b96 {vr(SC,3)}, {V('T16')} offset:{S1}
    ds_read_b96 {vr(SC+4,3)}, {V('T16')} offset:{S1+8192}
    v_mov_b32 v{SC+3}, s{sN0}
    v_mov_b32 v{SC+7}, s{sN0}
    s_and_b32 s{sK}, s{sW}, 1
    s_lshl_b32 s{sL}, s{sK}, 6
    s_waitcnt lgkmcnt(1)
    """)
    vmem(f"buffer_store_dwordx4 {vr(SC,4)}, {V('T16')}, s[12:15], s{sFLG} offen sc1", "r")
    a("s_waitcnt lgkmcnt(0)")
    vmem(f"buffer_store_dwordx4 {vr(SC+4,4)}, {V('PG')}, s[12:15], s{sRND} offen sc1", "r")
    if OP == 2: publish()
    stamp(12)
    if SL == 1: au_loads()
    if opt.get("PP", 0) == 3: vmem(f"buffer_load_dwordx2 {VR('GR',0,2)}, {V('PO')}, s[12:15], s{sOR} offen sc1", "poll")
    if BCP == 3: bc_loads()
    a(f"v_add_u32 {V('T1')}, s{sL}, {V('TR')}\ns_waitcnt vmcnt({vneed('au')})\ns_barrier")
    PP = opt.get("PP", 0)
    def poll(): vmem(f"buffer_load_dwordx2 {VR('GR',0,2)}, {V('PO')}, s[12:15], s{sOR} offen sc1", "poll")
    if PP == 0: poll()
    if SL:
        a(f"s_mul_i32 s{sV}, s{sNP}, {10*128}\ns_add_u32 s{sV}, s{sV}, {RING + 16384}\nv_add_u32 {V('EL')}, s{sV}, {V('EL')}")
        for ks in range(4): a(f"ds_read_b128 {vr(XN+4*ks,4)}, {V('EL')} offset:{32*ks}")
        vm.insert(0, 'xn')
    for ks in range(4): tr(WN + 4*ks, V('T1'), RING - WBV + 2048*ks)
    for ks in range(4): tr(WN + 16 + 4*ks, V('T1'), RING - WBV + 8192 + 2048*ks)
    if BCP == 2: bc_loads()
    if PP == 1: poll()
    XM = opt.get("XM", 0)
    if XM: xpf(XE, XE + XM, V('EA',6))
    XE += XM
    a(f"""
    s_mul_i32 s{sT}, s{sNP}, {10*1024}
    v_lshl_add_u32 {V('T0')}, {V('EH')}, 8, {V('J8')}
    v_lshl_add_u32 {V('T1')}, {V('EH')}, 6, {V('J8')}
    s_lshl_b32 s{sU}, s{sK}, 2
    s_add_u32 s{sU}, s{sU}, s{sT}
    s_lshl_b32 s{sL}, s{sK}, 8
    s_add_u32 s{sL}, s{sL}, s{sT}
    v_cmp_ne_u32 s[68:69], 0, {V('PAR')}
    s_waitcnt vmcnt({vneed('xn')}) lgkmcnt(8)
    """)
    z0, z1 = VR('Z',0,16), VR('Z',16,16)
    for ks in range(4): a(mf(z0, vr(XN+4*ks,4), vr(WN+4*ks,4), "0" if ks == 0 else z0))
    a("s_waitcnt lgkmcnt(0)")
    for ks in range(4): a(mf(z1, vr(XN+4*ks,4), vr(WN+16+4*ks,4), "0" if ks == 0 else z1))
    a(f"""
    v_add_u32 {V('GA',0)}, s{sU}, {V('T0')}
    v_add_u32 {V('GA',1)}, s{sU}, {V('T1')}
    v_add_u32 {V('GA',2)}, s{sL}, {V('T0')}
    v_add_u32 {V('GA',3)}, s{sL}, {V('T1')}
    v_cndmask_b32 {V('T2')}, {V('SUM',1)}, {V('SUM',3)}, s[68:69]
    s_mov_b32 s{sSPIN}, 0x40000
    s_mov_b32 s{sL}, {6*NL}
    s_mov_b32 s{sRND}, 1
    s_mov_b32 s{sFIRST}, 1
    s_mov_b32 s{sMSK}, 0xfc003fff
    """)
    def node_post():
        a(f"""
        s_mov_b32 s{sT}, {NEG_LOG2E:#x}
        v_mov_b32 {V('EA',0)}, 0
        """)
        for q in range(5): a(f"v_mul_f32 {V('Z',q)}, s{sT}, {V('Z',q)}")
        for q in range(5): a(f"v_exp_f32 {V('Z',8+q)}, {V('Z',q)}")
        for q in range(5):
            ro = (ROW + (q if q < 4 else 8) * 1024) // 256
            a(f"v_and_b32 {V('EA',1)}, 0x7fffffff, {V('Z',q)}")
            a(f"v_max_u32 {V('EA',0)}, {V('EA',0)}, {V('EA',1)}")
            a(f"ds_write2st64_b32 {V('GA',0) if q < 4 else V('GA',1)}, {V('Z',8+q)}, {V('Z',q)} offset0:{ro} offset1:{ro+1}")
        a(f"""
        v_cmp_lt_u32 vcc, 0x42700000, {V('EA',0)}
        """)
        for q in range(5):
            a(f"v_cvt_f64_f32 {VR('H',2*q,2)}, {V('Z',16+q)}")
            a(f"ds_write_b64 {V('GA',2) if q < 4 else V('GA',3)}, {VR('H',2*q,2)} offset:{AGG + (q if q < 4 else 8)*1024}")
        a(f"""
        s_and_b64 exec, exec, vcc
        ds_write_b32 {V('ZR')}, {V('ONE')} offset:{CNT+496}
        s_mov_b64 exec, -1
        """)
    def fill_lists(first):
        if not first:
            for i in range(4): a(f"v_mov_b32 {V('XF',4+i)}, 0")
            a(f"v_and_b32 {V('T3')}, 0x3f0, {V('T16')}")
            a(f"ds_write_b128 {V('T3')}, {VR('XF',4,4)} offset:{CNT}")
        for i in range(4): a(f"v_mov_b32 {V('XF',i)}, {DUMMY:#x}")
        for i in range(3): a(f"ds_write_b128 {V('T16')}, {VR('XF',0,4)} offset:{XLO+8192*i}")
    def bc_scale():
        a(f"""
        s_mov_b32 s{sT}, {NEG_LOG2E:#x}
        s_mov_b32 s{sU}, 0xffff0000
        v_add_u32 {V('EA',2)}, {WBV}, {V('T16')}
        """)
        for half in range(2):
            if half: a(f"s_cmp_ge_u32 s{sW}, 2\ns_cbranch_scc1 F_BCD")
            for q in range(4):
                a(f"v_lshlrev_b32 {V('H',16+2*q)}, 16, v{BC+4*half+q}")
                a(f"v_and_b32 {V('H',17+2*q)}, s{sU}, v{BC+4*half+q}")
            for q in range(8): a(f"v_mul_f32 {V('H',16+q)}, s{sT}, {V('H',16+q)}")
            for q in range(4): a(f"v_cvt_pk_bf16_f32 v{BC+8+4*half+q}, {V('H',16+2*q)}, {V('H',17+2*q)}")
            a(f"ds_write_b128 {V('EA',2)}, {vr(BC+8+4*half,4)} offset:{8192*half}")
        a("F_BCD:")
    NPOS = opt.get("NPOS", 1)
    if PP == 2: poll()
    if BCP == 1: bc_loads()
    fill_lists(True)
    if NPOS == 0: node_post()
    a(f"""
    F_POLL:
    s_waitcnt vmcnt(0)
    v_cmp_ne_u32 vcc, {V('GR',1)}, {V('T2')}
    s_cmp_eq_u64 vcc, 0
    s_cbranch_scc1 F_GOT
    s_sub_u32 s{sSPIN}, s{sSPIN}, 1
    s_cmp_eq_u32 s{sSPIN}, 0
    s_cbranch_scc1 F_LOST
    s_lshr_b64 s[56:57], vcc, 1
    s_or_b64 s[56:57], s[56:57], vcc
    s_andn2_b64 s[56:57], s[56:57], s[68:69]
    s_lshl_b64 s[58:59], s[56:57], 1
    s_or_b64 exec, s[56:57], s[58:59]
    buffer_load_dwordx2 {VR('GR',0,2)}, {V('PO')}, s[12:15], s{sOR} offen sc1
    s_branch F_POLL
    F_LOST:
    v_mov_b32 {V('GR',0)}, 0
    F_GOT:
    s_mov_b64 exec, -1
    """)
    if opt.get("STAMP"): a(f"s_sub_u32 s93, 0x40000, s{sSPIN}")
    a(f"""
    v_bfe_u32 {V('T3')}, {V('GR',0)}, 2, 14
    v_lshrrev_b32 {V('T1')}, 18, {V('GR',0)}
    v_mul_u32_u24 {V('T0')}, 21846, {V('T3')}
    v_cmp_ne_u32 vcc, 0, {V('T1')}
    v_lshrrev_b32 {V('T0')}, 16, {V('T0')}
    v_mad_i32_i24 {V('LO')}, {V('T0')}, -3, {V('T3')}
    v_lshl_add_u32 {V('SEG')}, {V('T0')}, 4, {V('SEG')}
    v_cndmask_b32 {V('LO')}, 0, {V('LO')}, vcc
    v_add_u32 {V('T2')}, {V('T1')}, {V('LO')}
    v_sub_u32 {V('CNT')}, {V('T2')}, {V('PAR')}
    v_sub_u32 {V('LO')}, {V('LO')}, {V('PAR')}
    s_branch K_SORT
    K_ROUND:
    s_barrier
    """)
    fill_lists(False)
    a(f"""
    v_subrev_u32 {V('CNT')}, s{sADV}, {V('CNT')}
    v_subrev_u32 {V('LO')}, s{sADV}, {V('LO')}
    s_cmp_lg_u32 s{sADV}, 0
    s_cselect_b32 s{sADV}, 32, 0
    v_add_u32 {V('SEG')}, s{sADV}, {V('SEG')}
    s_mov_b32 s{sADV}, 6
    s_waitcnt lgkmcnt(0)
    s_barrier
    K_SORT:
    v_sub_u32 {V('T3')}, s{sL}, {V('PAR')}
    v_min_i32 {V('T3')}, {V('CNT')}, {V('T3')}
    s_mov_b32 s{sSPIN}, 0x40000
    """)
    stamp(1)
    for k in range(NL): a(f"v_cmp_lt_i32 s[{SM+6*k}:{SM+6*k+1}], {6*k}, {V('T3')}")
    def seg_loads(flag, done):
        for k in range(NL):
            a(f"s_and_b64 exec, s[{SM+6*k}:{SM+6*k+1}], s[{SM+6*k}:{SM+6*k+1}]\ns_cbranch_scc0 {done}")
            a(f"buffer_load_dwordx4 {vr(REC+4*k,4)}, {V('SEG')}, s[12:15], 0 offen offset:{32*k} {flag}")
    seg_loads("" if opt.get("SEGL1", 1) else "sc1", "K_LD")
    a(f"""
    K_LD:
    s_mov_b64 exec, -1
    """)
    for n in range(3*NL):
        if n % 3: a(f"v_cmp_lt_i32 s[{SM+2*n}:{SM+2*n+1}], {6*(n//3)+n%3}, {V('T3')}")
    a(f"""
    s_lshl_b32 s{sT}, s{sW}, 7
    v_bfe_u32 {V('PX')}, v0, 3, 3
    v_lshlrev_b32 {V('PX')}, 4, {V('PX')}
    s_add_u32 s{sU}, s{sT}, {XLO}
    v_add_u32 {V('PX')}, s{sU}, {V('PX')}
    v_lshl_add_u32 {V('PG')}, {V('EH')}, 2, s{sU}
    s_add_u32 s{sV}, s{sT}, {ELO}
    v_add_u32 {V('PE')}, s{sV}, {V('LE')}
    v_lshrrev_b32 {V('T0')}, 1, {V('ER')}
    v_min_u32 {V('T0')}, {BN*8}, {V('T0')}
    s_cmp_eq_u32 s{sFIRST}, 0
    s_cbranch_scc1 K_VER
    v_cmp_lt_u32 vcc, {6*NL}, {V('T2')}
    s_and_b64 exec, exec, vcc
    ds_max_u32 {V('ZR')}, {V('T2')} offset:{CNT+504}
    s_mov_b64 exec, -1
    """)
    if NPOS == 1: node_post()
    bc_scale()
    a(f"""
    K_VER:
    s_mov_b64 s[96:97], 0
    s_waitcnt vmcnt(0)
    """)
    for k in range(NL):
        a(f"v_cmp_ne_u32 vcc, s{sN0}, v{REC+4*k+3}")
        a(f"s_and_b64 vcc, vcc, s[{SM+6*k}:{SM+6*k+1}]")
        a(f"s_or_b64 s[96:97], s[96:97], vcc")
    a(f"""
    s_cbranch_scc0 K_OK
    s_sub_u32 s{sSPIN}, s{sSPIN}, 1
    s_cmp_eq_u32 s{sSPIN}, 0
    s_cbranch_scc1 K_LOST
    """)
    seg_loads("sc1", "K_LD2")
    a("K_LD2:\ns_mov_b64 exec, -1\ns_branch K_VER\nK_LOST:")
    for n in range(3*NL): a(f"s_mov_b64 s[{SM+2*n}:{SM+2*n+1}], 0")
    a(f"""
    K_OK:
    """)
    if opt.get("STAMP"): a(f"s_sub_u32 s95, 0x40000, s{sSPIN}\ns_min_u32 s93, s93, 3\ns_lshl_b32 s95, s95, 2\ns_add_u32 s95, s95, s93")
    a(f"""
    v_cmp_ge_i32 vcc, 0, {V('LO')}
    v_cmp_ge_i32 s[96:97], 1, {V('LO')}
    s_and_b64 s[{SM}:{SM+1}], s[{SM}:{SM+1}], vcc
    s_and_b64 s[{SM+2}:{SM+3}], s[{SM+2}:{SM+3}], s[96:97]
    """)
    stamp(2)
    XL_ = opt.get("XLATE", 0)
    XT = opt.get('XT', 40)
    if XE < XT and XL_ == 0: xpf(XE, XT, V('DUM'))
    EALL = opt.get("EALL", 0)
    D0 = opt.get("D0", 4)
    def groups(done):
        for k in range(NL):
            if k > 1: a(f"s_cmp_eq_u64 s[{SM+6*k}:{SM+6*k+1}], 0\ns_cbranch_scc1 {done}")
            yield range(3*k, 3*k+3)
    for g in groups("K_P1D"):
        for n in g:
            a(f"v_and_b32 v{XV+n}, s{sMSK}, v{rec(n)}")
            a(f"v_lshrrev_b32 v{RA+n}, 23, v{XV+n}")
        for n in g:
            a(f"s_mov_b64 exec, s[{SM+2*n}:{SM+2*n+1}]")
            a(f"ds_add_rtn_u32 v{RK+n}, v{RA+n}, {V('ONE')} offset:{CNT}")
        a("s_mov_b64 exec, -1")
        for n in g:
            if n >= 9 or n < 3 or EALL:
                a(f"v_bfe_u32 v{rec(n)}, v{rec(n)}, 14, 12")
                a(f"v_lshl_add_u32 v{rec(n)}, v{rec(n)}, 5, {V('EB')}")
    a("K_P1D:")
    EPF = opt.get("EPF", 3)
    a(f"""
    s_waitcnt lgkmcnt(0)
    s_barrier
    ds_read_b32 {V('T2')}, {V('T0')} offset:{CNT}
    ds_read_b128 {VR('GR',0,4)}, {V('ZR')} offset:{CNT+496}
    """)
    stamp(10)
    def epf(n0):
        a(f"s_mov_b32 s{sV}, {EPF << 26:#x}")
        for q in range(3): a(f"v_cmp_gt_u32 {cm[q]}, s{sV}, v{XV+n0+q}")
        for q in range(3):
            n = n0 + q
            a(f"s_and_b64 exec, {cm[q]}, s[{SM+2*n}:{SM+2*n+1}]")
            a(f"s_cbranch_scc0 K_EP{n}\nbuffer_load_dword {V('DUM')}, v{rec(n)}, s[8:11], 0 offen\nK_EP{n}:")
        a("s_mov_b64 exec, -1")
    if EPF: epf(0)
    if EPF and EALL: epf(3); epf(6)
    if XE < XT and XL_ == 1: xpf(XE, XT, V('DUM'))
    a(f"""
    s_waitcnt lgkmcnt(0)
    v_and_b32 {V('T1')}, -64, {V('T2')}
    v_and_b32 {V('T2')}, 63, {V('T2')}
    v_add_u32 {V('T2')}, 12, {V('T2')}
    v_and_b32 {V('T2')}, -16, {V('T2')}
    v_lshl_or_b32 {V('T2')}, {V('T2')}, 16, {V('T1')}
    v_mov_b32 {V('T3')}, {V('T2')}
    """)
    fl = [f"v_bfe_u32 v{rec(n)}, v{rec(n)}, 14, 12" for n in range(3, 9)] + [f"v_lshl_add_u32 v{rec(n)}, v{rec(n)}, 5, {V('EB')}" for n in range(3, 9)] + ["s_nop 0"]
    if EALL: fl = ["s_nop 0"] * 13
    for mod in DPP:
        a(fl.pop(0)); a(fl.pop(0))
        a(f"v_add_u32_dpp {V('T3')}, {V('T3')}, {V('T3')} {mod}")
    a(fl.pop(0))
    if opt.get("ST2"): stamp(11)
    a(f"""
    v_readlane_b32 s{sT}, {V('T3')}, 63
    v_readlane_b32 s{sU}, {V('T3')}, {D0-1}
    v_sub_u32 {V('T3')}, {V('T3')}, {V('T2')}
    s_lshr_b32 s{sNP}, s{sT}, 16
    s_add_u32 s{sNP}, s{sNP}, 63
    s_and_b32 s{sNP}, s{sNP}, -64
    s_and_b32 s{sU}, s{sU}, 0xffff
    v_lshrrev_b32 {V('T2')}, 16, {V('T3')}
    v_and_b32 {V('T3')}, 0xffff, {V('T3')}
    v_sub_u32 {V('T2')}, {V('T2')}, {V('T1')}
    v_lshl_or_b32 {V('T3')}, {V('T1')}, 16, {V('T3')}
    v_add_u32 {V('T2')}, s{sU}, {V('T2')}
    s_mov_b64 exec, {-(1 << D0)}
    v_add_u32 {V('T3')}, s{sNP}, {V('T3')}
    s_mov_b64 exec, -1
    ds_write2_b32 {V('T0')}, {V('T3')}, {V('T2')} offset0:128 offset1:129
    """)
    for g in groups("K_P2A"):
        for n in g: a(f"ds_read_b64 {vr(RB+2*n,2)}, v{RA+n} offset:512")
    a(f"""
    K_P2A:
    s_cmp_eq_u32 s{sFIRST}, 0
    s_cbranch_scc1 K_CHK
    v_readfirstlane_b32 s{sFLG}, {V('GR',0)}
    v_readfirstlane_b32 s{sV}, {V('GR',2)}
    s_mov_b32 s{sFIRST}, 0
    s_and_b32 s{sK}, s{sT}, 0xffff
    s_add_u32 s{sK}, s{sK}, s{sNP}
    s_cmp_gt_u32 s{sK}, {4*CAP}
    s_cselect_b32 s{sK}, {6*NL}, 0
    s_max_u32 s{sV}, s{sK}, s{sV}
    s_cmp_eq_u32 s{sV}, 0
    s_cbranch_scc1 K_CHK
    s_add_u32 s{sRND}, s{sV}, 5
    s_mul_i32 s{sRND}, s{sRND}, 10923
    s_lshr_b32 s{sRND}, s{sRND}, 16
    s_mov_b32 s{sL}, 6
    s_mov_b32 s{sADV}, 0
    s_waitcnt lgkmcnt(0)
    s_branch K_ROUND
    K_CHK:
    """)
    for x in fl: a(x)
    if EPF and not EALL: epf(3); epf(6)
    if XE < XT and XL_ == 2: xpf(XE, XT, V('DUM'))
    a(f"""
    s_waitcnt lgkmcnt(0)
    """)
    if opt.get("ST2"): stamp(8)
    for g in groups("K_P2D"):
        for n in g: a(f"v_cmp_lt_u32_sdwa {cm[n%3]}, v{RK+n}, v{RB+2*n} src0_sel:DWORD src1_sel:WORD_1")
        for n in g: a(f"v_cndmask_b32 v{RB+2*n}, v{RB+2*n+1}, v{RB+2*n}, {cm[n%3]}")
        for n in g: a(f"v_add_u32_sdwa v{RB+2*n}, v{RB+2*n}, v{RK+n} dst_sel:WORD_0 dst_unused:UNUSED_PAD src0_sel:DWORD src1_sel:DWORD")
        for n in g:
            a(f"s_mov_b64 exec, s[{SM+2*n}:{SM+2*n+1}]")
            a(f"ds_write2st64_b32 v{RB+2*n}, v{XV+n}, v{rec(n)} offset0:{XLO//256} offset1:{ELO//256}")
        a("s_mov_b64 exec, -1")
    a(f"""
    K_P2D:
    """)
    HS = opt.get("HS", 0)
    sMODE, sHK = 34, 35
    a(f"""
    """)
    if opt.get("ST2"): stamp(12)
    a(f"""
    s_waitcnt lgkmcnt(0)
    s_barrier
    """)
    stamp(3)
    uid = [0]
    lds = []
    def em(x):
        if isinstance(x, tuple):
            if x[0] == "need":
                n = len(lds) - 1 - max(i for i, t in enumerate(lds) if t == x[1])
                a(f"s_waitcnt lgkmcnt({min(n,15)})")
                return
            lds.append(x[1]); x = x[0]
        if opt.get("NODMA") and ("buffer_load" in x): return
        if opt.get("NOE") and ("buffer_load" in x and "s[8:11]" in x): return
        if opt.get("NOX") and ("buffer_load" in x and "s[4:7]" in x): return
        if opt.get("NOXF") and x.startswith("ds_read_b128") and lds[-1].startswith("xf"): x = "ds_read_b32 " + V('DUM') + ", " + V('ZR')
        a(x)
    def list_read(off):
        return [(f"ds_read_b128 {VR('XL',0,4)}, {V('PX')} offset:{off*1024}", "list"), (f"ds_read_b32 {V('EL')}, {V('PE')} offset:{off*1024}", "list")]
    def pf_addr():
        return [f"v_add_u32 {V('EL')}, {V('EL')}, {V('EH')}"] + \
               [f"v_mad_u32_u16 {V('XL',q)}, {V('XL',q)}, s{s128}, {V('XA',q)}" for q in range(4)]
    def e_load(slot): return f"buffer_load_dwordx4 {VR('EF',4*slot,4)}, {V('EL')}, s[8:11], 0 offen {['','sc1','nt','sc0','sc0 sc1'][opt.get('EFL',0)]}"
    def x_m0(slot, q): return f"s_add_u32 m0, s{sRING}, {slot*SLOT+1024*q}"
    def x_load(q): return f"buffer_load_dwordx4 {V('XL',q)}, s[4:7], 0 offen {['','sc1','nt','sc0','sc0 sc1'][opt.get('XFL',0)]} lds"
    def guarded(x):
        uid[0] += 1
        return [f"s_cbranch_vccnz K_SK{uid[0]}", x, f"K_SK{uid[0]}:"]
    def gl_read(gen):
        if gen: o = [(f"ds_read2_b32 {VR('GR',0,2)}, {V('PG')} offset0:0 offset1:4", "gl"), (f"ds_read2_b32 {VR('GR',2,2)}, {V('PG')} offset0:8 offset1:12", "gl")]
        else: o = [(f"ds_read_b32 {V('GR',0)}, {V('PG')}", "gl")]
        return o + [f"v_add_u32 {V('PG')}, 1024, {V('PG')}"]
    def gl_use(gen):
        n = 4 if gen else 1
        return [f"v_add_u32_sdwa {V('GA',g)}, {V('GR',g)}, {V('J8')} dst_sel:DWORD dst_unused:UNUSED_PAD src0_sel:WORD_1 src1_sel:DWORD" for g in range(n)] + \
               [(f"ds_read_b64 {VR('EA',2*g,2)}, {V('GA',g)} offset:{ROW}", "ea") for g in range(n)]
    def frag_reads(slot): return [(f"ds_read_b128 {VR('XF',4*ks,4)}, {V('XR',ks)} offset:{slot*SLOT}", f"xf{ks}") for ks in range(4)]
    def m_chain(nt, slot):
        z = VR('Z',16*nt,16); h = VR('H',16*nt,16)
        o = [mf(z, VR('EF',4*slot,4), VR('WZ',20*nt+16,4), "0")]
        o += [mf(z, VR('XF',4*ks,4), VR('WZ',20*nt+4*ks,4), z) for ks in range(4)]
        o += [mf(h, VR('XF',4*ks,4), VR('WH',16*nt+4*ks,4), "0" if ks == 0 else h) for ks in range(4)]
        return o
    def v_seq(nt, gen):
        z = r['Z'] + 16*nt; h = r['H'] + 16*nt; s = r['SUM']; ea = r['EA']
        o = [(f"v_exp_f32 v{z+i}, v{z+i}", 8) for i in range(16)]
        if nt == 0: o += [(("need", "ea"), 0)]
        o += [(f"v_pk_fma_f32 {vr(z+i,2)}, {vr(z+i,2)}, {vr(ea + (2*(i>>2) if gen else 0),2)}, 1.0 op_sel:[0,{nt},0] op_sel_hi:[1,{nt},0]", 0) for i in range(0,16,2)]
        o += [(f"v_rcp_f32 v{z+i}, v{z+i}", 8) for i in range(16)]
        if gen:
            o += [(f"v_pk_mul_f32 {vr(s+2*g,2)}, {vr(z+4*g,2)}, {vr(h+4*g,2)}", 0) for g in range(4)]
            o += [(f"v_pk_fma_f32 {vr(s+2*g,2)}, {vr(z+4*g+2,2)}, {vr(h+4*g+2,2)}, {vr(s+2*g,2)}", 0) for g in range(4)]
            o += [(f"v_add_f32 v{s+2*g}, v{s+2*g}, v{s+2*g+1}", 4) for g in range(4)]
            o += [(f"v_cvt_f64_f32 {vr(s+2*g,2)}, v{s+2*g}", 4) for g in range(4)]
        else:
            ACC1 = opt.get("ACC1", 1)
            for i in range(8):
                d = vr(s + (0 if ACC1 else 2*(i & 1)), 2)
                if i < (1 if ACC1 else 2): o.append((f"v_pk_mul_f32 {d}, {vr(z+2*i,2)}, {vr(h+2*i,2)}", 0))
                else: o.append((f"v_pk_fma_f32 {d}, {vr(z+2*i,2)}, {vr(h+2*i,2)}, {d}", 0))
            if not ACC1: o.append((f"v_pk_add_f32 {vr(s,2)}, {vr(s,2)}, {vr(s+2,2)}", 0))
            o.append((f"v_add_f32 v{s}, v{s}, v{s+1}", 4))
            o.append((f"v_cvt_f64_f32 {vr(s,2)}, v{s}", 4))
        return o
    def flush(nt, gen): return [(f"ds_add_f64 {V('GA',g)}, {VR('SUM',2*g,2)} offset:{AGG+256*nt}", "fl") for g in range(4 if gen else 1)]
    cold = []
    def exact_xa(nt):
        uid[0] += 1
        z = r['Z'] + 16*nt
        a(f"s_cmp_lg_u32 s{sFLG}, 0\ns_cbranch_scc1 K_FB{uid[0]}\nK_FR{uid[0]}:")
        o = [f"K_FB{uid[0]}:", "s_waitcnt lgkmcnt(0)"]
        o += [f"ds_read_b32 {V('EA',2*g+nt)}, {V('GA',g)} offset:{ROW+256+4*nt}" for g in range(4)]
        o += ["s_waitcnt lgkmcnt(0)", "s_nop 7"]
        o += [f"v_add_f32 v{z+i}, v{z+i}, {V('EA',2*(i>>2)+nt)}" for i in range(16)]
        o += [f"v_mov_b32 {V('EA',2*g+nt)}, 1.0" for g in range(4)]
        o += [f"s_branch K_FR{uid[0]}"]
        cold.extend(o)
    POS = {0: [0, 24, 48, 72, 96, 128, 152, 176, 200], 1: [0, 24, 48, 72, 128, 152, 176, 200, 224], 2: [0, 24, 48, 72, 96, 128, 160, 192, 224], 3: [0, 16, 40, 64, 88, 128, 144, 168, 192]}[opt.get("POS", 0)]
    def weave(vs, ms, before, after):
        cost = 0; mi = 0
        for ins, c in vs:
            while mi < len(ms) and cost >= POS[mi] and c > 0:
                for x in before.get(mi, []): em(x)
                a(ms[mi])
                for x in after.get(mi, []): em(x)
                mi += 1
            em(ins)
            cost += c
        assert mi == len(ms)
    def tick():
        if opt.get("TICK"):
            a(f"s_memtime s[56:57]\ns_waitcnt lgkmcnt(0)\ns_lshl_b64 exec, 1, s58\nv_mov_b32 {V('PO')}, s56\ns_mov_b64 exec, -1\ns_add_u32 s58, s58, 1")
    def iteration(u, gen):
        nslot = 1 - u
        lds.append("ea")
        tick()
        if PRIO and not gen:
            uid[0] += 1
            a(f"s_cmp_le_u32 s{sK}, {PT}\ns_cbranch_scc1 K_PB{uid[0]}\nK_PR{uid[0]}:")
            back = f"K_PR{uid[0]}"
            cold.extend([f"K_PB{uid[0]}:", "s_setprio 2"])
            if HS:
                cold.extend([f"s_lshl_b32 s{sT}, s{sHK}, 8",
                             f"s_cmp_eq_u32 s{sK}, 4", f"s_cselect_b32 s{sU}, s{sT}, 0",
                             f"v_subrev_u32 {V('PX')}, s{sU}, {V('PX')}", f"v_subrev_u32 {V('PE')}, s{sU}, {V('PE')}",
                             f"s_cmp_eq_u32 s{sK}, 2", f"s_cselect_b32 s{sU}, s{sT}, 0",
                             f"v_subrev_u32 {V('PG')}, s{sU}, {V('PG')}"])
            cold.extend([f"s_cmp_lg_u32 s{sK}, 1", f"s_cbranch_scc1 {back}", "s_setprio 1"])
            if HS: cold.extend([f"s_cmp_lg_u32 s{sMODE}, 0", "s_cbranch_scc1 K_HALF"])
            cold.append(f"s_branch {back}")
        if gen: exact_xa(0)
        weave(v_seq(0, gen), m_chain(1, u), {}, {8: ["s_waitcnt vmcnt(0)"] + frag_reads(nslot)})
        for x in flush(0, gen): em(x)
        if gen or not HS:
            a(f"s_sub_u32 s{sK}, s{sK}, 1\ns_cmp_eq_u32 s{sK}, 0\ns_cbranch_scc1 K_LAST{'G' if gen else 'P'}")
        else:
            uid[0] += 1
            a(f"s_sub_u32 s{sK}, s{sK}, 1\ns_cmp_le_u32 s{sK}, s{sHK}\ns_cbranch_scc1 K_SW{uid[0]}\nK_SR{uid[0]}:")
            cold.extend([f"K_SW{uid[0]}:", f"s_cmp_eq_u32 s{sK}, 0", "s_cbranch_scc1 K_LASTP"])
            cold.extend([f"v_mov_b32 {V('WZ',i)}, {V('WZ',20+i)}" for i in range(20)] + [f"v_mov_b32 {V('WH',i)}, {V('WH',16+i)}" for i in range(16)])
            cold.append(f"s_branch K_SR{uid[0]}")
        if gen: exact_xa(1)
        before = {i + 1: [("need", f"xf{i}"), x_m0(u, i)] for i in range(4)}
        before[7] = [("need", "gl")] + pf_addr()
        after = {0: [e_load(u)]}
        for i in range(4): after[i + 1] = [x_load(i)]
        after[4] = after[4] + list_read(u + 3) + gl_read(gen)
        weave(v_seq(1, gen), m_chain(0, nslot), before, after)
        for x in flush(1, gen) + gl_use(gen): em(x)
        if u == 1:
            a(f"v_add_u32 {V('PX')}, 2048, {V('PX')}")
            a(f"v_add_u32 {V('PE')}, 2048, {V('PE')}")
    PT = opt.get("PT", 4)
    PRIO = opt.get("PRIO", 1)
    if opt.get("TICK"):
        a(f"s_mov_b32 s58, 0\nv_mov_b32 {V('PO')}, 0")
        tick()
    for x in list_read(0) + gl_read(True) + [("need", "list")] + pf_addr(): em(x)
    a(e_load(0))
    for q in range(4): a(x_m0(0, q) + "\ns_nop 0\n" + x_load(q))
    for x in list_read(1): em(x)
    a(f"""
    s_and_b32 s{sT}, s{sT}, 0xffff
    s_add_u32 s{sT}, s{sT}, s{sNP}
    s_add_u32 s{sT}, s{sT}, 127
    s_lshr_b32 s{sT}, s{sT}, 7
    s_sub_u32 s{sK}, 7, s{sW}
    s_add_u32 s{sU}, s{sU}, s{sNP}
    s_add_u32 s{sU}, s{sU}, 127
    s_lshr_b32 s{sU}, s{sU}, 7
    s_add_u32 s{sNP}, s{sU}, s{sK}
    s_mov_b32 s{sTG}, s{sU}
    s_add_u32 s{sK}, s{sT}, s{sK}
    s_mov_b32 s{sSPIN}, s{sT}
    s_lshr_b32 s{sNP}, s{sNP}, 3
    s_lshr_b32 s{sK}, s{sK}, 3
    s_cmp_lg_u32 s{sFLG}, 0
    s_cselect_b32 s{sNP}, -1, s{sNP}
    s_cmp_eq_u32 s{sK}, 0
    s_cbranch_scc1 K_WEND
    """)
    if HS:
        a(f"""
        s_and_b32 s{sT}, s{sSPIN}, 3
        s_xor_b32 s{sU}, s{sSPIN}, s{sW}
        s_and_b32 s{sU}, s{sU}, 4
        s_and_b32 s{sMODE}, s{sW}, 1
        s_add_u32 s{sU}, s{sU}, s{sMODE}
        s_cmp_eq_u32 s{sT}, 3
        s_cselect_b32 s{sT}, 0, s{sT}
        s_bfe_u32 s{sMODE}, s{sW}, 0x10001
        s_add_u32 s{sMODE}, s{sMODE}, 1
        s_cmp_lt_u32 s{sU}, s{sT}
        s_cselect_b32 s{sMODE}, s{sMODE}, 0
        s_add_u32 s{sT}, s{sTG}, 40
        s_cmp_le_u32 s{sT}, s{sSPIN}
        s_cselect_b32 s{sMODE}, s{sMODE}, 0
        s_cmp_lg_u32 s{sFLG}, 0
        s_cselect_b32 s{sMODE}, 0, s{sMODE}
        s_lshr_b32 s{sHK}, s{sMODE}, 1
        s_add_u32 s{sK}, s{sK}, s{sHK}
        """)
    XR_ = opt.get("XREST", 0)
    if XR_ and XT < 40: xpf(max(XT, XE), 40, V('DUM'))
    for nt in range(2):
        for ks in range(5): tr(r['WZ'] + 20*nt + 4*ks, V('TR'), 2048*ks + 64*nt)
        for ks in range(4): tr(r['WH'] + 16*nt + 4*ks, V('TR'), 80*128 + 2048*ks + 64*nt)
    a("s_waitcnt lgkmcnt(0)")
    for x in pf_addr() + gl_use(True): em(x)
    a(f"s_waitcnt vmcnt({1 if XR_ and XT < 40 else 0})")
    stamp(4)
    for x in frag_reads(0): em(x)
    if PRIO: a("s_setprio 3")
    for i, x in enumerate(m_chain(0, 0)):
        if 1 <= i <= 4: em(("need", f"xf{i-1}")); a(x_m0(1, i-1))
        a(x)
        if i == 0:
            a(e_load(1))
        if 1 <= i <= 4:
            a(x_load(i-1))
        if i == 4:
            for y in list_read(2): em(y)
    for x in [("need", "list")] + pf_addr(): em(x)
    a("s_nop 3")
    if opt.get("STAMP"): a("s_memtime s[96:97]\ns_mov_b32 s100, s%d\ns_waitcnt lgkmcnt(0)" % sK)
    a(f"s_cmp_eq_u32 s{sNP}, 0\ns_cbranch_scc1 K_PURE0\nK_GEN0:")
    iteration(0, True)
    a(f"s_sub_u32 s{sNP}, s{sNP}, 1\ns_cmp_eq_u32 s{sNP}, 0\ns_cbranch_scc1 K_PURE1")
    iteration(1, True)
    a(f"s_sub_u32 s{sNP}, s{sNP}, 1\ns_cmp_eq_u32 s{sNP}, 0\ns_cbranch_scc0 K_GEN0")
    if "AL" in opt:
        a("s_branch K_PURE0\n.p2align 6")
        for i in range(opt["AL"]): a("s_nop 0")
    a("K_PURE0:")
    iteration(0, False)
    a("K_PURE1:")
    iteration(1, False)
    a("s_branch K_PURE0\nK_LASTG:")
    exact_xa(1)
    for x, c in v_seq(1, True): em(x)
    for x in flush(1, True): em(x)
    a("s_branch K_WEND")
    for x in cold: a(x)
    if HS:
        a(f"""
        K_HALF:
        s_setprio 0
        s_lshl_b32 s{sT}, s{sHK}, 8
        s_cmp_lg_u32 s{sHK}, 0
        s_cselect_b64 vcc, -1, 0
        s_waitcnt lgkmcnt(0)
        v_add_u32 {V('GA',0)}, s{sT}, {V('GA',0)}
        v_cndmask_b32 {V('EA',0)}, {V('EA',0)}, {V('EA',1)}, vcc
        """)
        lds.append("ea")
        for x, c in v_seq(0, False): em(x)
        for x in flush(0, False): em(x)
        a("s_branch K_WEND")
    a("K_LASTP:")
    if PRIO: a("s_setprio 0")
    for x, c in v_seq(1, False): em(x)
    for x in flush(1, False): em(x)
    a("K_WEND:")
    tick()
    stamp(5)
    if opt.get("STAMP"): a("s_memtime s[98:99]")
    a(f"""
    s_waitcnt vmcnt(0) lgkmcnt(0)
    s_sub_u32 s{sRND}, s{sRND}, 1
    s_cmp_gt_i32 s{sRND}, 0
    s_cbranch_scc1 K_ROUND
    v_lshrrev_b32 {V('T1')}, 3, v0
    v_and_b32 {V('T3')}, 7, v0
    v_lshlrev_b32 {V('T1')}, 10, {V('T1')}
    v_lshl_add_u32 {V('T1')}, {V('T3')}, 6, {V('T1')}
    v_add_u32 {V('T0')}, s{sNODE}, {V('T16')}
    v_cmp_gt_u32 vcc, s{sNB8}, v0
    s_mov_b32 s{sT}, {NEG_LOG2E:#x}
    s_barrier
    """)
    stamp(6)
    a(f"""
    s_or_b32 s{sU}, s{sW}, s2
    s_cmp_lg_u32 s{sU}, 0
    s_cbranch_scc1 K_NOTAG
    v_mov_b32 {V('T2')}, s{sN0}
    s_mov_b32 s{sU}, {T_OFF}
    s_mov_b64 exec, 1
    buffer_store_dword {V('T2')}, {V('ZR')}, s[12:15], s{sU} offen sc1
    s_mov_b64 exec, -1
    K_NOTAG:
    """)
    a(f"""
    s_and_b64 exec, exec, vcc
    s_cbranch_scc0 K_FIN
    ds_read_b128 {VR('Z',16,4)}, {V('T1')} offset:{AGG}
    ds_read_b128 {VR('Z',20,4)}, {V('T1')} offset:{AGG+16}
    ds_read_b128 {VR('Z',24,4)}, {V('T1')} offset:{AGG+32}
    ds_read_b128 {VR('Z',28,4)}, {V('T1')} offset:{AGG+48}
    s_waitcnt lgkmcnt(0)
    """)
    for i in range(8): a(f"v_cvt_f32_f64 {V('Z',i)}, {VR('Z',16+2*i,2)}")
    for i in range(8): a(f"v_mul_f32 {V('H',i)}, s{sT}, {V('Z',i)}")
    for i in range(8): a(f"v_exp_f32 {V('H',i)}, {V('H',i)}")
    for i in range(8): a(f"v_add_f32 {V('H',i)}, 1.0, {V('H',i)}")
    for i in range(8): a(f"v_rcp_f32 {V('H',i)}, {V('H',i)}")
    for i in range(8): a(f"v_mul_f32 {V('Z',i)}, {V('Z',i)}, {V('H',i)}")
    for q in range(4): a(f"v_cvt_pk_bf16_f32 {V('H',8+q)}, {V('Z',2*q)}, {V('Z',2*q+1)}")
    a(f"global_store_dwordx4 {V('T0')}, {VR('H',8,4)}, s[16:17] {['','sc1','nt'][opt.get('OST',0)]}")
    a("K_FIN:")
    if opt.get("TICK"):
        a(f"""
        s_mov_b64 exec, -1
        s_lshl_b32 s58, s2, 11
        s_add_u32 s58, s58, 0x500000
        v_lshl_add_u32 {V('T2')}, v0, 2, s58
        global_store_dword {V('T2')}, {V('PO')}, s[12:13]
        """)
    if opt.get("STAMP"):
        a("s_waitcnt vmcnt(0)")
        stamp(7)
        t = r['T1']
        a(f"""
        s_waitcnt lgkmcnt(0)
        s_mov_b64 exec, 1
        v_lshrrev_b32 v{t}, 6, v0
        s_lshl_b32 s68, s2, 4
        v_add_u32 v{t}, s68, v{t}
        v_lshlrev_b32 v{t}, 6, v{t}
        v_add_u32 v{t}, {STAMP_OFF + 0x40000}, v{t}
        """)
        for i in range(16):
            a(f"v_mov_b32 v{t+1}, s{95 if i == 9 else 70+2*i}")
            a(f"global_store_dword v{t}, v{t+1}, s[12:13] offset:{4*i}")
    if "SPIN" in opt:
        k = opt["SPIN"]; k0 = opt.get("SPIN0", 0)
        if k >= 100: a("s_mov_b32 s43, 0")
        else: a(f"s_sub_u32 s43, s{70+2*k}, s{70+2*k0}\ns_max_i32 s43, s43, 0\ns_mul_i32 s43, s43, 10")
        a("""
        s_add_u32 s43, s43, 20000
        s_min_u32 s43, s43, 100000
        F_SPIN:
        s_sleep 8
        s_memrealtime s[44:45]
        s_waitcnt lgkmcnt(0)
        s_sub_u32 s44, s44, s70
        s_cmp_lt_u32 s44, s43
        s_cbranch_scc1 F_SPIN
        """)
    a("K_END:")
    return a.text(), NV, LDS

HDR = open("cdna_kernels/%s.s.ref" % NAME).read().split("; Override launch")[0]

DOC = """;
"""

def generate(opt):
    body, nv, lds = gen(opt)
    main = NAME + "_kernel"
    s = HDR
    s += f"; @launch grid=(256,1,1) block=(512,1,1) lds={lds}\n"
    s += DOC
    s += '.amdgcn_target "amdgcn-amd-amdhsa--gfx950"\n.text\n'
    s += f".globl {main}\n.p2align 8\n.type {main},@function\n{main}:\n{body}s_endpgm\n"
    s += f""".section .rodata,"a"
.p2align 6
.amdhsa_kernel {main}
  .amdhsa_next_free_vgpr {nv}
  .amdhsa_next_free_sgpr 102
  .amdhsa_accum_offset {(nv + 3) // 4 * 4}
  .amdhsa_group_segment_fixed_size 0
  .amdhsa_kernarg_size 80
  .amdhsa_user_sgpr_count 2
  .amdhsa_user_sgpr_kernarg_segment_ptr 1
  .amdhsa_system_sgpr_workgroup_id_x 1
.end_amdhsa_kernel
"""
    return s

if __name__ == "__main__":
    opt = {}
    out = f"cdna_kernels/{NAME}.s"
    for x in sys.argv[1:]:
        if "=" in x:
            k, v = x.split("="); opt[k] = int(v)
        else: out = x
    open(out, "w").write(generate(opt))
    print("wrote", out)
```

```python
import sys

NAME = "standalone__edge_featured_mpnn_egc__graph"
N, E = 10000, 640000
NCH, CH = 250, 2560
BN = 40
RSTR = 107 * 128
OSTR = 4096 + 128
O_OFF = 0x348000
T_OFF = 0x458000
WS_BYTES = 0x460000
NEG_LOG2E = 0xBFB8AA3B
assert NCH * RSTR <= O_OFF and O_OFF + 256 * OSTR <= T_OFF
STAMP_OFF = 0x480000
DPP = ("row_shr:1 row_mask:0xf bank_mask:0xf bound_ctrl:0", "row_shr:2 row_mask:0xf bank_mask:0xf bound_ctrl:0",
       "row_shr:4 row_mask:0xf bank_mask:0xf bound_ctrl:0", "row_shr:8 row_mask:0xf bank_mask:0xf bound_ctrl:0",
       "row_bcast:15 row_mask:0xa bank_mask:0xf", "row_bcast:31 row_mask:0xc bank_mask:0xf")

class Asm:
    def __init__(self): self.l = []
    def __call__(self, s):
        for x in s.split("\n"):
            x = x.strip()
            if x: self.l.append(("" if x.endswith(":") else "    ") + x)
    def text(self): return "\n".join(self.l) + "\n"

def vr(b, n=1): return f"v{b}" if n == 1 else f"v[{b}:{b+n-1}]"

def gen(opt):
    LT = 96
    CAP = LT * 32
    SLOT = 4096
    CNT = 0
    ROW = 1024
    AGG = ROW + 512
    XLO = ROW + BN * 1024
    ELO = XLO + CAP * 4
    WBV = ELO + CAP * 4
    RING = WBV + 144 * 128
    LDS = RING + 8 * 2 * SLOT
    assert LDS <= 163840 and XLO % 256 == 0 and ELO % 256 == 0 and ELO // 256 < 256
    C1, B1A, S1 = ROW, ROW + 1024, ROW + 2048
    DUMMY = 0x0400FFFF
    r = {}
    nxt = [1]
    def al(name, n=1, align=1):
        b = (nxt[0] + align - 1) // align * align
        r[name] = b; nxt[0] = b + n; return b
    for nm in ("EH","ER","PX","PE","PG","J8","EL","T0","T1","T2","T3","CNT","SEG","EB","ONE","LE","DUM","ZR","TR","XP","PO","PAR","T16","LO"):
        al(nm)
    for nm in ("XA","XR","XL","GA","GR"): al(nm, 4, 4)
    al("EA", 8, 4); al("SUM", 8, 4)
    al("WZ", 40, 4); al("WH", 32, 4); al("Z", 32, 4); al("H", 32, 4); al("XF", 16, 4); al("EF", 8, 4); al("REC", 24, 4)
    NV = nxt[0]
    assert NV <= 256, NV
    V = lambda n, o=0: f"v{r[n]+o}"
    VR = lambda n, o, c: vr(r[n]+o, c)
    NL = 6
    REC = r["REC"]; RA = r["Z"]; RK = r["H"]; RB = r["WZ"]; XV = r["XF"]
    rec = lambda n: REC + 4*(n//3) + n%3
    assert r["EF"] == r["XF"] + 16
    D_, S_, KA, RC, RK1, SC = r["H"], r["H"] + 8, r["H"] + 16, r["H"] + 24, r["XF"], r["REC"]
    XN, WN, BC = r["WH"], r["WZ"], r["WH"] + 16
    sBIN = 3
    sW, sRING, sK, sT, sU, sL, sRND, sNODE, s128, sBIG, sMSK, sNP, sFLG, sV, sNB8, sFIRST = range(18, 34)
    SM = 34
    sN0, sN1, sSPIN, sADV, sTG = 88, 89, 99, 3, 98
    sOW, sOR, sM0 = 64, 65, 59
    cm = ["vcc", "s[96:97]", "s[100:101]"]
    a = Asm()
    def stamp(i):
        if opt.get("STAMP"): a(f"s_memrealtime s[{70+2*i}:{71+2*i}]")
    def mf(d, A, B, c): return f"v_mfma_f32_32x32x16_bf16 {d}, {A}, {B}, {c}"
    def setexec(m): return f"s_mov_b32 exec_lo, {m & 0xffffffff:#x}\ns_mov_b32 exec_hi, {m >> 32:#x}"
    vm = []
    def vmem(x, tag): vm.append(tag); a(x)
    def vneed(tag): return len(vm) - 1 - max(i for i, t in enumerate(vm) if t == tag)
    BCP = opt.get("BCP", 3)
    def bc_loads():
        a(f"s_add_u32 m0, s{sM0}, {WBV + 80*128}\ns_movk_i32 s57, 0x2000\ns_movk_i32 s58, 0x4000")
        vmem(f"buffer_load_dwordx4 {vr(BC,4)}, {V('T16')}, s[60:63], s57 offen", "bc")
        vmem(f"buffer_load_dwordx4 {vr(BC+4,4)}, {V('T16')}, s[60:63], s58 offen", "bc")
        vmem(f"global_load_lds_dwordx4 {V('T16')}, s[46:47]", "v")
    XE = opt.get("XE", 8)
    def xpf(lo, hi, dst):
        a(setexec(((1 << hi) - 1) ^ ((1 << lo) - 1)))
        vmem(f"buffer_load_dword {dst}, {V('XP')}, s[4:7], 0 offen", "xpf")
        a("s_mov_b64 exec, -1")
    def tr(dst, addr, off):
        for hf in range(2): a(f"ds_read_b64_tr_b16 {vr(dst+2*hf,2)}, {addr} offset:{off + 512*hf}")

    stamp(0)
    a(f"""
    s_load_dwordx16 s[36:51], s[0:1], 0
    s_load_dwordx4 s[52:55], s[0:1], 64
    v_readfirstlane_b32 s{sW}, v0
    s_getpc_b64 s[56:57]
    F_PC0:
    s_lshr_b32 s{sU}, s2, 3
    s_lshl_b32 s{sK}, s{sU}, 9
    s_add_u32 s{sK}, s{sK}, s{sW}
    s_and_b32 s{sK}, s{sK}, 0x3fff
    """)
    if opt.get("CV", 1):
        a(f"""
        s_min_u32 s{sT}, s{sK}, K_END - F_PC0
        v_mov_b32 {V('T1')}, s{sT}
        s_mov_b64 exec, 1
        global_load_dword {V('EA',3)}, {V('T1')}, s[56:57]
        s_mov_b64 exec, -1
        """)
    else:
        a(f"s_min_u32 s{sT}, s{sK}, K_END - F_PC0\ns_load_dword s58, s[56:57], s{sT}")
    a(f"""
    s_cmp_ge_u32 s2, 256
    s_cbranch_scc1 K_END
    v_lshlrev_b32 {V('T16')}, 4, v0
    s_min_u32 s{sV}, s2, {NCH-1}
    s_mul_i32 s{sV}, s{sV}, {CH*4}
    v_add_u32 {V('PX')}, s{sV}, {V('T16')}
    s_add_u32 s{sV}, s{sV}, 8192
    v_lshl_add_u32 {V('PE')}, v0, 2, s{sV}
    """)
    for i in range(4): a(f"v_mov_b32 {V('Z',4+i)}, 0")
    a(f"""
    v_and_b32 {V('T3')}, 0x7f0, {V('T16')}
    ds_write_b128 {V('T3')}, {VR('Z',4,4)} offset:{CNT}
    s_lshr_b32 s{sW}, s{sW}, 6
    s_mov_b32 s{sT}, {T_OFF}
    s_and_b32 s{sL}, s{sK}, 0x7ff
    s_add_u32 s{sL}, s{sL}, 0x4000
    s_and_b32 s{sNP}, s{sK}, 0x1fff
    s_waitcnt lgkmcnt(0)
    """)
    P11 = opt.get("P11", 0)
    if P11 == 1: stamp(11)
    vmem(f"global_load_dwordx4 {vr(D_,4)}, {V('PX')}, s[42:43] {['','nt','sc1'][opt.get('DNT',0)]}", "dst")
    vmem(f"global_load_dword v{D_+4}, {V('PE')}, s[42:43] {['','nt','sc1'][opt.get('DNT',0)]}", "dst")
    def src_loads():
        vmem(f"global_load_dwordx4 {vr(S_,4)}, {V('PX')}, s[40:41] {['','nt','sc1'][opt.get('DNT',0)]}", "src")
        vmem(f"global_load_dword v{S_+4}, {V('PE')}, s[40:41] {['','nt','sc1'][opt.get('DNT',0)]}", "src")
    SRC = opt.get("SRC", 1)
    if SRC == 0: src_loads()
    a(f"""
    s_load_dword s{sN0}, s[54:55], s{sT}
    """)
    if opt.get("WPF", 0):
        a(f"""
        s_load_dword s56, s[48:49], s{sK}
        s_load_dword s57, s[44:45], s{sNP}
        s_load_dword s58, s[46:47], s{sNP}
        s_load_dword s66, s[48:49], s{sL}
        """)
    a(f"""
    s_and_b32 s{sT}, s2, 7
    s_lshl_b32 s{sT}, s{sT}, 5
    s_add_u32 s{sBIN}, s{sT}, s{sU}
    s_mul_i32 s{sNODE}, s{sBIN}, 625
    s_add_u32 s{sNODE}, s{sNODE}, 15
    s_add_u32 s{sNB8}, s{sNODE}, 625
    s_lshr_b32 s{sNODE}, s{sNODE}, 4
    s_lshr_b32 s{sNB8}, s{sNB8}, 4
    s_sub_u32 s{sNB8}, s{sNB8}, s{sNODE}
    s_lshl_b32 s{sNODE}, s{sNODE}, 7
    s_mov_b32 s4, s36
    s_mov_b32 s5, s37
    s_mov_b32 s6, {N*128}
    s_mov_b32 s7, 0x20000
    s_barrier
    """)
    if P11 == 2: stamp(11)
    if SRC == 1: src_loads()
    a(f"""
    v_bfe_u32 {V('EH')}, v0, 5, 1
    v_and_b32 {V('T2')}, 31, v0
    v_lshlrev_b32 {V('EH')}, 4, {V('EH')}
    v_min_u32 {V('T2')}, 9, {V('T2')}
    v_lshl_add_u32 {V('EL')}, {V('T2')}, 7, {V('EH')}
    s_lshr_b32 s{sNP}, s{sW}, 1
    s_mul_i32 s{sV}, s{sNP}, {10*128}
    s_add_u32 s{sV}, s{sV}, s{sNODE}
    """)
    XNP = opt.get("XNP", 1)
    def xn_loads():
        a(setexec(0x000011ff000011ff))
        for ks in range(4): vmem(f"buffer_load_dwordx4 {vr(XN+4*ks,4)}, {V('EL')}, s[4:7], s{sV} offen offset:{32*ks}", "xn")
        a("s_mov_b64 exec, -1")
    if XNP == 0: xn_loads()
    if opt.get("TCH", 1):
        a(f"""
        s_mul_i32 s{sT}, s{sW}, {5*128}
        s_add_u32 s{sT}, s{sT}, s{sNODE}
        v_lshlrev_b32 {V('T1')}, 7, {V('T2')}
        s_lshl_b32 s{sK}, s{sK}, 1
        s_and_b32 s58, s{sK}, 0x1fff
        s_cmp_lt_u32 s{sK}, 0x6000
        s_cselect_b64 s[56:57], s[46:47], s[44:45]
        s_cmp_lt_u32 s{sK}, 0x4000
        s_cselect_b64 s[56:57], s[48:49], s[56:57]
        s_cselect_b32 s{sK}, s{sK}, s58
        s_cselect_b32 s{sL}, s{sL}, s58
        v_mov_b32 {V('T3')}, s{sK}
        v_writelane_b32 {V('T3')}, s{sL}, 1
        s_mov_b64 exec, 31
        """)
        vmem(f"buffer_load_dword {V('EA',4)}, {V('T1')}, s[4:7], s{sT} offen", "tch")
        vmem(f"global_load_dword {V('EA',5)}, {V('T3')}, s[56:57]", "tch")
        a("s_mov_b64 exec, -1")
    FE = opt.get("FE", 1)
    if FE:
        for i in range(4): a(f"v_mov_b32 {V('Z',i)}, {DUMMY:#x}")
        for i in range(3): a(f"ds_write_b128 {V('T16')}, {VR('Z',0,4)} offset:{XLO+8192*i}")
    a(f"""
    v_and_b32 {V('T1')}, 63, v0
    v_mov_b32 {V('ZR')}, 0
    s_mov_b32 s12, s54
    s_mov_b32 s13, s55
    s_mov_b32 s14, {WS_BYTES}
    s_mov_b32 s15, 0x20000
    s_mov_b32 s{sBIG}, 0x80000000
    s_mul_i32 s{sOW}, s2, {OSTR}
    s_add_u32 s{sOW}, s{sOW}, {O_OFF}
    s_cmp_ge_u32 s{sW}, 4
    s_cselect_b32 s{sOW}, s{sBIG}, s{sOW}
    """)
    if opt.get("OPF", 0): vmem(f"buffer_store_dwordx4 {VR('Z',4,4)}, {V('T16')}, s[12:15], s{sOW} offen sc1", "opf")
    a(f"""
    s_mul_i32 s{sFLG}, s2, {RSTR}
    s_cmp_ge_u32 s2, {NCH}
    s_cselect_b32 s{sFLG}, s{sBIG}, s{sFLG}
    s_add_u32 s{sRND}, s{sFLG}, 8192
    v_cmp_gt_u32 vcc, 344, v0
    v_mov_b32 {V('PG')}, 0x40000000
    s_nop 0
    v_cndmask_b32 {V('PG')}, {V('PG')}, {V('T16')}, vcc
    """)
    if opt.get("RPF", 0):
        vmem(f"buffer_store_dwordx4 {VR('Z',4,4)}, {V('T16')}, s[12:15], s{sFLG} offen sc1", "opf")
        vmem(f"buffer_store_dwordx4 {VR('Z',4,4)}, {V('PG')}, s[12:15], s{sRND} offen sc1", "opf")
    a(f"""
    s_mov_b32 s8, s38
    s_mov_b32 s9, s39
    s_mov_b32 s10, {E*32}
    s_mov_b32 s11, 0x20000
    s_mov_b32 s16, s50
    s_mov_b32 s17, s51
    s_mov_b32 s60, s48
    s_mov_b32 s61, s49
    s_mov_b32 s62, {144*128}
    s_mov_b32 s63, 0x20000
    s_lshl_b32 s{sOR}, s{sBIN}, 4
    s_add_u32 s{sOR}, s{sOR}, {O_OFF}
    v_lshlrev_b32 {V('ER')}, 4, {V('T1')}
    s_movk_i32 s{s128}, 128
    s_lshl_b32 s{sNB8}, s{sNB8}, 3
    s_lshl_b32 s{sU}, s{sU}, 3
    s_add_u32 s{sU}, s{sU}, s{sW}
    s_mul_i32 s{sU}, s{sU}, {40*128}
    v_lshl_add_u32 {V('XP')}, {V('ER')}, 3, s{sU}
    s_lshl_b32 s{sM0}, s{sW}, 10
    s_lshl_b32 s{sRING}, s{sW}, 13
    s_add_u32 s{sRING}, s{sRING}, {RING}
    v_and_b32 {V('T2')}, 7, v0
    v_lshlrev_b32 {V('T2')}, 4, {V('T2')}
    v_lshlrev_b32 {V('T3')}, 2, {V('EH')}
    v_xor_b32 {V('XA',0)}, {V('T2')}, {V('T3')}
    v_xor_b32 {V('XA',1)}, 16, {V('XA',0)}
    v_xor_b32 {V('XA',2)}, 32, {V('XA',0)}
    v_xor_b32 {V('XA',3)}, 48, {V('XA',0)}
    ; XF read offsets: LDS row 8*(i&3) + g; slot = (2ks+h) ^ (i&7)
    v_xor_b32 {V('T0')}, {V('T2')}, {V('EH')}
    v_and_b32 {V('T2')}, 31, v0
    v_lshlrev_b32 {V('J8')}, 3, {V('T2')}
    v_and_b32 {V('T1')}, 3, v0
    v_lshrrev_b32 {V('T3')}, 3, {V('T2')}
    v_and_or_b32 {V('T3')}, v0, 4, {V('T3')}
    v_lshl_add_u32 {V('LE')}, {V('T3')}, 2, {V('T1')}
    v_lshlrev_b32 {V('LE')}, 2, {V('LE')}
    v_lshl_add_u32 {V('T3')}, {V('T1')}, 3, {V('T3')}
    v_lshl_add_u32 {V('T3')}, {V('T3')}, 7, s{sRING}
    """)
    for ks in range(4):
        a(f"v_xor_b32 {V('XR',ks)}, {32*ks}, {V('T0')}")
        a(f"v_add_u32 {V('XR',ks)}, {V('XR',ks)}, {V('T3')}")
    a(f"""
    v_bfe_u32 {V('T3')}, v0, 2, 2
    v_lshlrev_b32 {V('T3')}, 7, {V('T3')}
    v_lshl_add_u32 {V('T3')}, {V('EH')}, 6, {V('T3')}
    v_lshl_add_u32 {V('T3')}, {V('T1')}, 3, {V('T3')}
    v_and_b32 {V('T2')}, 16, v0
    v_lshl_add_u32 {V('T3')}, {V('T2')}, 1, {V('T3')}
    v_add_u32 {V('TR')}, {WBV}, {V('T3')}
    """)
    if opt.get("CMAP", 0): a(f"v_bfe_u32 {V('T1')}, v0, 1, 5\nv_lshl_add_u32 {V('T1')}, {V('T1')}, 3, s{sW}")
    else: a(f"v_lshrrev_b32 {V('T1')}, 1, v0")
    a(f"""
    v_and_b32 {V('PAR')}, 1, v0
    v_mul_u32_u24 {V('SEG')}, {RSTR}, {V('T1')}
    v_mul_u32_u24 {V('PO')}, {OSTR}, {V('T1')}
    v_mul_u32_u24 {V('EB')}, {CH*32}, {V('T1')}
    v_lshl_add_u32 {V('SEG')}, {V('PAR')}, 4, {V('SEG')}
    v_lshl_add_u32 {V('PO')}, {V('PAR')}, 3, {V('PO')}
    v_mul_u32_u24 {V('PAR')}, 3, {V('PAR')}
    v_mov_b32 {V('ONE')}, 4
    s_mov_b32 s{sK}, 214749
    s_movk_i32 s{sL}, 625
    v_lshlrev_b32 {V('T2')}, 16, v0
    v_lshlrev_b32 {V('T3')}, 14, v0
    v_add_u32 {V('T3')}, {2048<<14:#x}, {V('T3')}
    """)
    SL = opt.get("SL", 2)
    def au_loads():
        vmem(f"global_load_lds_dwordx4 {V('T16')}, s[48:49]", "au")
        a(f"s_add_u32 m0, s{sM0}, {RING + 8192}")
        a("s_nop 0")
        vmem(f"global_load_lds_dwordx4 {V('T16')}, s[44:45]", "au")
        if SL:
            a(f"s_add_u32 m0, s{sM0}, {RING + 16384}\ns_cmp_lt_u32 s{sW}, 5\ns_cselect_b32 s{sV}, s{sNODE}, s{sBIG}")
            vmem(f"buffer_load_dwordx4 {V('T16')}, s[4:7], s{sV} offen lds", "au")
    if BCP == 4: bc_loads()
    a(f"s_add_u32 m0, s{sM0}, {RING}")
    if SL == 3:
        a("s_nop 0")
        au_loads()
    if P11 == 4: stamp(11)
    a(f"s_waitcnt vmcnt({vneed('dst')})")
    if P11 == 0: stamp(11)
    if SRC == 2: src_loads()
    for i in range(5):
        a(f"""
        v_mul_u32_u24 v{KA+i}, s{sK}, v{D_+i}
        v_lshrrev_b32 v{KA+i}, 23, v{KA+i}
        v_mad_u32_u24 v{RC+i}, v{KA+i}, s{sL}, 15
        v_lshlrev_b32 v{KA+i}, 2, v{KA+i}
        ds_add_rtn_u32 v{RK1+i}, v{KA+i}, {V('ONE')} offset:{C1}
        """)
    if SL in (0, 2): au_loads()
    a(f"""
    s_waitcnt lgkmcnt(0)
    s_barrier
    ds_read_b128 {vr(SC,4)}, {V('ER')} offset:{C1}
    s_mul_i32 s{sN0}, s{sN0}, 0x9e3779b1
    s_add_u32 s{sN0}, s{sN0}, 0x7f4a7c15
    s_mul_i32 s{sN1}, s{sN0}, 0x85ebca6b
    """)
    if P11 == 3: stamp(11)
    if XNP == 1 and not SL: xn_loads()
    for i in range(5):
        a(f"v_lshrrev_b32 v{RC+i}, 4, v{RC+i}")
        a(f"v_sub_u32 v{RC+i}, v{D_+i}, v{RC+i}")
    a(f"""
    s_waitcnt lgkmcnt(0)
    v_add_u32 v{SC+5}, v{SC}, v{SC+1}
    v_add_u32 v{SC+6}, v{SC+5}, v{SC+2}
    v_add_u32 v{SC+7}, v{SC+6}, v{SC+3}
    v_mov_b32 v{SC+4}, v{SC+7}
    """)
    fl = [f"v_lshl_or_b32 v{RC+i}, v{RC+i}, 26, {V('T2') if i < 4 else V('T3')}" for i in range(5)]
    fl += [f"v_add_u32 v{RC+i}, {i<<14}, v{RC+i}" for i in range(1, 4)]
    fl += [f"v_lshlrev_b32 {V('T2')}, 2, v0", f"v_and_b32 {V('T2')}, 0x3fc, {V('T2')}", f"v_mov_b32 {V('SUM',3)}, s{sN1}", f"s_movk_i32 s{sT}, 21846"]
    for mod in DPP:
        a(fl.pop(0)); a(fl.pop(0))
        a(f"v_add_u32_dpp v{SC+4}, v{SC+4}, v{SC+4} {mod}")
    assert not fl
    a(f"""
    v_sub_u32 v{SC+8}, v{SC+4}, v{SC+7}
    v_add_u32 v{SC+9}, v{SC+8}, v{SC}
    v_add_u32 v{SC+10}, v{SC+8}, v{SC+5}
    v_add_u32 v{SC+11}, v{SC+8}, v{SC+6}
    ds_write_b128 {V('ER')}, {vr(SC+8,4)} offset:{B1A}
    """)
    a(f"ds_read2st64_b32 {VR('SUM',0,2)}, {V('T2')} offset0:{C1//256} offset1:{B1A//256}")
    for i in range(5): a(f"ds_read_b32 v{D_+i}, v{KA+i} offset:{B1A}")
    if BCP == 0: bc_loads()
    if XE: xpf(0, XE, V('EA',7))
    def publish():
        a(f"""
        v_lshl_or_b32 {V('SUM',0)}, {V('SUM',0)}, 16, {V('SUM',1)}
        s_cmp_lt_u32 s2, {NCH}
        s_cselect_b32 s{sU}, -1, 0
        v_mov_b32 {V('SUM',1)}, s{sN0}
        v_and_b32 {V('SUM',0)}, s{sU}, {V('SUM',0)}
        v_mov_b32 {V('SUM',2)}, {V('SUM',0)}
        """)
        vmem(f"buffer_store_dwordx4 {VR('SUM',0,4)}, {V('T16')}, s[12:15], s{sOW} offen sc1", "pub")
        stamp(8)
    OP = opt.get("OP", 0)
    if OP == 0:
        a("s_waitcnt lgkmcnt(5)")
        publish()
    a(f"s_waitcnt vmcnt({vneed('src')})")
    for i in range(5): a(f"v_or_b32 v{RC+i}, v{S_+i}, v{RC+i}")
    a("s_waitcnt lgkmcnt(0)")
    for i in range(5):
        a(f"v_add_u32 v{D_+i}, v{D_+i}, v{RK1+i}")
        a(f"v_mul_u32_u24 v{KA+i}, s{sT}, v{D_+i}")
        a(f"v_lshrrev_b32 v{KA+i}, 18, v{KA+i}")
        a(f"v_lshl_add_u32 v{D_+i}, v{KA+i}, 2, v{D_+i}")
        a(f"ds_write_b32 v{D_+i}, v{RC+i} offset:{S1}")
    if OP == 1: publish()
    a(f"""
    s_waitcnt lgkmcnt(0)
    s_barrier
    ds_read_b96 {vr(SC,3)}, {V('T16')} offset:{S1}
    ds_read_b96 {vr(SC+4,3)}, {V('T16')} offset:{S1+8192}
    v_mov_b32 v{SC+3}, s{sN0}
    v_mov_b32 v{SC+7}, s{sN0}
    s_and_b32 s{sK}, s{sW}, 1
    s_lshl_b32 s{sL}, s{sK}, 6
    s_waitcnt lgkmcnt(1)
    """)
    vmem(f"buffer_store_dwordx4 {vr(SC,4)}, {V('T16')}, s[12:15], s{sFLG} offen {['sc1','sc0 sc1','sc1 nt'][opt.get('RFL',0)]}", "r")
    a("s_waitcnt lgkmcnt(0)")
    vmem(f"buffer_store_dwordx4 {vr(SC+4,4)}, {V('PG')}, s[12:15], s{sRND} offen {['sc1','sc0 sc1','sc1 nt'][opt.get('RFL',0)]}", "r")
    if OP == 2: publish()
    stamp(12)
    if SL == 1: au_loads()
    if opt.get("PP", 0) == 3: vmem(f"buffer_load_dwordx2 {VR('GR',0,2)}, {V('PO')}, s[12:15], s{sOR} offen sc1", "poll")
    if BCP == 3: bc_loads()
    a(f"v_add_u32 {V('T1')}, s{sL}, {V('TR')}\ns_waitcnt vmcnt({vneed('au')})\ns_barrier")
    PP = opt.get("PP", 0)
    def poll(): vmem(f"buffer_load_dwordx2 {VR('GR',0,2)}, {V('PO')}, s[12:15], s{sOR} offen sc1", "poll")
    if PP == 0: poll()
    if SL:
        a(f"s_mul_i32 s{sV}, s{sNP}, {10*128}\ns_add_u32 s{sV}, s{sV}, {RING + 16384}\nv_add_u32 {V('EL')}, s{sV}, {V('EL')}")
        for ks in range(4): a(f"ds_read_b128 {vr(XN+4*ks,4)}, {V('EL')} offset:{32*ks}")
        vm.insert(0, 'xn')
    for ks in range(4): tr(WN + 4*ks, V('T1'), RING - WBV + 2048*ks)
    ML = opt.get("ML", 0)
    for ks in range(4): tr(WN + 16 + 4*ks, V('T1'), RING - WBV + 8192 + 2048*ks)
    if BCP == 2: bc_loads()
    if PP == 1: poll()
    XM = opt.get("XM", 0)
    if XM: xpf(XE, XE + XM, V('EA',6))
    XE += XM
    a(f"""
    s_mul_i32 s{sT}, s{sNP}, {10*1024}
    v_lshl_add_u32 {V('T0')}, {V('EH')}, 8, {V('J8')}
    v_lshl_add_u32 {V('T1')}, {V('EH')}, 6, {V('J8')}
    s_lshl_b32 s{sU}, s{sK}, 2
    s_add_u32 s{sU}, s{sU}, s{sT}
    s_lshl_b32 s{sL}, s{sK}, 8
    s_add_u32 s{sL}, s{sL}, s{sT}
    v_cmp_ne_u32 s[68:69], 0, {V('PAR')}
    """)
    z0, z1 = VR('Z',0,16), VR('Z',16,16)
    def chain0():
        a("s_waitcnt lgkmcnt(8)" if ML < 2 else "s_waitcnt lgkmcnt(0)")
        for ks in range(4): a(mf(z0, vr(XN+4*ks,4), vr(WN+4*ks,4), "0" if ks == 0 else z0))
    def chain1():
        a("s_waitcnt lgkmcnt(0)")
        for ks in range(4): a(mf(z1, vr(XN+4*ks,4), vr(WN+16+4*ks,4), "0" if ks == 0 else z1))
    if ML < 2: chain0()
    if ML < 1: chain1()
    a(f"""
    v_add_u32 {V('GA',0)}, s{sU}, {V('T0')}
    v_add_u32 {V('GA',1)}, s{sU}, {V('T1')}
    v_add_u32 {V('GA',2)}, s{sL}, {V('T0')}
    v_add_u32 {V('GA',3)}, s{sL}, {V('T1')}
    v_cndmask_b32 {V('T2')}, {V('SUM',1)}, {V('SUM',3)}, s[68:69]
    s_mov_b32 s{sSPIN}, 0x400000
    s_mov_b32 s{sL}, {6*NL}
    s_mov_b32 s{sRND}, 1
    s_mov_b32 s{sFIRST}, 1
    s_mov_b32 s{sMSK}, 0xfc003fff
    """)
    def node_post():
        a(f"""
        s_mov_b32 s{sT}, {NEG_LOG2E:#x}
        v_mov_b32 {V('EA',0)}, 0
        """)
        for q in range(5): a(f"v_mul_f32 {V('Z',q)}, s{sT}, {V('Z',q)}")
        for q in range(5): a(f"v_exp_f32 {V('Z',8+q)}, {V('Z',q)}")
        for q in range(5):
            ro = (ROW + (q if q < 4 else 8) * 1024) // 256
            a(f"v_and_b32 {V('EA',1)}, 0x7fffffff, {V('Z',q)}")
            a(f"v_max_u32 {V('EA',0)}, {V('EA',0)}, {V('EA',1)}")
            a(f"ds_write2st64_b32 {V('GA',0) if q < 4 else V('GA',1)}, {V('Z',8+q)}, {V('Z',q)} offset0:{ro} offset1:{ro+1}")
        a(f"""
        v_cmp_lt_u32 vcc, 0x42700000, {V('EA',0)}
        """)
        for q in range(5):
            a(f"v_cvt_f64_f32 {VR('H',2*q,2)}, {V('Z',16+q)}")
            a(f"ds_write_b64 {V('GA',2) if q < 4 else V('GA',3)}, {VR('H',2*q,2)} offset:{AGG + (q if q < 4 else 8)*1024}")
        a(f"""
        s_and_b64 exec, exec, vcc
        ds_write_b32 {V('ZR')}, {V('ONE')} offset:{CNT+496}
        s_mov_b64 exec, -1
        """)
    def fill_lists(first):
        if not first:
            for i in range(4): a(f"v_mov_b32 {V('XF',4+i)}, 0")
            a(f"v_and_b32 {V('T3')}, 0x3f0, {V('T16')}")
            a(f"ds_write_b128 {V('T3')}, {VR('XF',4,4)} offset:{CNT}")
        for i in range(4): a(f"v_mov_b32 {V('XF',i)}, {DUMMY:#x}")
        for i in range(3): a(f"ds_write_b128 {V('T16')}, {VR('XF',0,4)} offset:{XLO+8192*i}")
    def bc_scale():
        a(f"""
        s_mov_b32 s{sT}, {NEG_LOG2E:#x}
        s_mov_b32 s{sU}, 0xffff0000
        v_add_u32 {V('EA',2)}, {WBV}, {V('T16')}
        """)
        for half in range(2):
            if half: a(f"s_cmp_ge_u32 s{sW}, 2\ns_cbranch_scc1 F_BCD")
            for q in range(4):
                a(f"v_lshlrev_b32 {V('H',16+2*q)}, 16, v{BC+4*half+q}")
                a(f"v_and_b32 {V('H',17+2*q)}, s{sU}, v{BC+4*half+q}")
            for q in range(8): a(f"v_mul_f32 {V('H',16+q)}, s{sT}, {V('H',16+q)}")
            for q in range(4): a(f"v_cvt_pk_bf16_f32 v{BC+8+4*half+q}, {V('H',16+2*q)}, {V('H',17+2*q)}")
            a(f"ds_write_b128 {V('EA',2)}, {vr(BC+8+4*half,4)} offset:{8192*half}")
        a("F_BCD:")
    NPOS = opt.get("NPOS", 1)
    if PP == 2: poll()
    if BCP == 1: bc_loads()
    if not FE: fill_lists(True)
    if NPOS == 0: node_post()
    a(f"""
    F_POLL:
    s_waitcnt vmcnt(0)
    v_cmp_ne_u32 vcc, {V('GR',1)}, {V('T2')}
    s_cmp_eq_u64 vcc, 0
    s_cbranch_scc1 F_GOT
    s_sub_u32 s{sSPIN}, s{sSPIN}, 1
    s_cmp_eq_u32 s{sSPIN}, 0
    s_cbranch_scc1 F_LOST
    s_lshr_b64 s[56:57], vcc, 1
    s_or_b64 s[56:57], s[56:57], vcc
    s_andn2_b64 s[56:57], s[56:57], s[68:69]
    s_lshl_b64 s[58:59], s[56:57], 1
    s_or_b64 exec, s[56:57], s[58:59]
    buffer_load_dwordx2 {VR('GR',0,2)}, {V('PO')}, s[12:15], s{sOR} offen sc1
    s_branch F_POLL
    F_LOST:
    v_mov_b32 {V('GR',0)}, 0
    F_GOT:
    s_mov_b64 exec, -1
    """)
    if opt.get("STAMP"): a(f"s_sub_u32 s93, 0x400000, s{sSPIN}")
    a(f"""
    v_bfe_u32 {V('T3')}, {V('GR',0)}, 2, 14
    v_lshrrev_b32 {V('T1')}, 18, {V('GR',0)}
    v_mul_u32_u24 {V('T0')}, 21846, {V('T3')}
    v_cmp_ne_u32 vcc, 0, {V('T1')}
    v_lshrrev_b32 {V('T0')}, 16, {V('T0')}
    v_mad_i32_i24 {V('LO')}, {V('T0')}, -3, {V('T3')}
    v_lshl_add_u32 {V('SEG')}, {V('T0')}, 4, {V('SEG')}
    v_cndmask_b32 {V('LO')}, 0, {V('LO')}, vcc
    v_add_u32 {V('T2')}, {V('T1')}, {V('LO')}
    v_sub_u32 {V('CNT')}, {V('T2')}, {V('PAR')}
    v_sub_u32 {V('LO')}, {V('LO')}, {V('PAR')}
    s_branch K_SORT
    K_ROUND:
    s_barrier
    """)
    fill_lists(False)
    a(f"""
    v_subrev_u32 {V('CNT')}, s{sADV}, {V('CNT')}
    v_subrev_u32 {V('LO')}, s{sADV}, {V('LO')}
    s_cmp_lg_u32 s{sADV}, 0
    s_cselect_b32 s{sADV}, 32, 0
    v_add_u32 {V('SEG')}, s{sADV}, {V('SEG')}
    s_mov_b32 s{sADV}, 6
    s_waitcnt lgkmcnt(0)
    s_barrier
    K_SORT:
    v_sub_u32 {V('T3')}, s{sL}, {V('PAR')}
    v_min_i32 {V('T3')}, {V('CNT')}, {V('T3')}
    s_mov_b32 s{sSPIN}, 0x400000
    """)
    stamp(1)
    for k in range(NL): a(f"v_cmp_lt_i32 s[{SM+6*k}:{SM+6*k+1}], {6*k}, {V('T3')}")
    def seg_loads(flag, done):
        for k in range(NL):
            a(f"s_and_b64 exec, s[{SM+6*k}:{SM+6*k+1}], s[{SM+6*k}:{SM+6*k+1}]\ns_cbranch_scc0 {done}")
            a(f"buffer_load_dwordx4 {vr(REC+4*k,4)}, {V('SEG')}, s[12:15], 0 offen offset:{32*k} {flag}")
    seg_loads("" if opt.get("SEGL1", 1) else "sc1", "K_LD")
    a(f"""
    K_LD:
    s_mov_b64 exec, -1
    """)
    if ML:
        a(f"s_cmp_eq_u32 s{sFIRST}, 0\ns_cbranch_scc1 K_NOM")
        if ML == 2: chain0()
        chain1()
        a("K_NOM:")
    for n in range(3*NL):
        if n % 3: a(f"v_cmp_lt_i32 s[{SM+2*n}:{SM+2*n+1}], {6*(n//3)+n%3}, {V('T3')}")
    a(f"""
    s_lshl_b32 s{sT}, s{sW}, 7
    v_bfe_u32 {V('PX')}, v0, 3, 3
    v_lshlrev_b32 {V('PX')}, 4, {V('PX')}
    s_add_u32 s{sU}, s{sT}, {XLO}
    v_add_u32 {V('PX')}, s{sU}, {V('PX')}
    v_lshl_add_u32 {V('PG')}, {V('EH')}, 2, s{sU}
    s_add_u32 s{sV}, s{sT}, {ELO}
    v_add_u32 {V('PE')}, s{sV}, {V('LE')}
    v_lshrrev_b32 {V('T0')}, 1, {V('ER')}
    v_min_u32 {V('T0')}, {BN*8}, {V('T0')}
    s_cmp_eq_u32 s{sFIRST}, 0
    s_cbranch_scc1 K_VER
    v_cmp_lt_u32 vcc, {6*NL}, {V('T2')}
    s_and_b64 exec, exec, vcc
    ds_max_u32 {V('ZR')}, {V('T2')} offset:{CNT+504}
    s_mov_b64 exec, -1
    """)
    if NPOS == 1: node_post()
    bc_scale()
    a(f"""
    K_VER:
    s_mov_b64 s[96:97], 0
    s_waitcnt vmcnt(0)
    """)
    for k in range(NL):
        a(f"v_cmp_ne_u32 vcc, s{sN0}, v{REC+4*k+3}")
        a(f"s_and_b64 vcc, vcc, s[{SM+6*k}:{SM+6*k+1}]")
        a(f"s_or_b64 s[96:97], s[96:97], vcc")
    a(f"""
    s_cbranch_scc0 K_OK
    s_sub_u32 s{sSPIN}, s{sSPIN}, 1
    s_cmp_eq_u32 s{sSPIN}, 0
    s_cbranch_scc1 K_LOST
    """)
    seg_loads("sc1", "K_LD2")
    a("K_LD2:\ns_mov_b64 exec, -1\ns_branch K_VER\nK_LOST:")
    for n in range(3*NL): a(f"s_mov_b64 s[{SM+2*n}:{SM+2*n+1}], 0")
    a(f"""
    K_OK:
    """)
    if opt.get("STAMP"): a(f"s_sub_u32 s95, 0x400000, s{sSPIN}\ns_min_u32 s93, s93, 3\ns_lshl_b32 s95, s95, 2\ns_add_u32 s95, s95, s93")
    a(f"""
    v_cmp_ge_i32 vcc, 0, {V('LO')}
    v_cmp_ge_i32 s[96:97], 1, {V('LO')}
    s_and_b64 s[{SM}:{SM+1}], s[{SM}:{SM+1}], vcc
    s_and_b64 s[{SM+2}:{SM+3}], s[{SM+2}:{SM+3}], s[96:97]
    """)
    stamp(2)
    XL_ = opt.get("XLATE", 0)
    XT = opt.get('XT', 32)
    if XE < XT and XL_ == 0: xpf(XE, XT, V('DUM'))
    EALL = opt.get("EALL", 0)
    D0 = opt.get("D0", 4)
    def groups(done):
        for k in range(NL):
            if k > 1: a(f"s_cmp_eq_u64 s[{SM+6*k}:{SM+6*k+1}], 0\ns_cbranch_scc1 {done}")
            yield range(3*k, 3*k+3)
    for g in groups("K_P1D"):
        for n in g:
            a(f"v_and_b32 v{XV+n}, s{sMSK}, v{rec(n)}")
            a(f"v_lshrrev_b32 v{RA+n}, 23, v{XV+n}")
        for n in g:
            a(f"s_mov_b64 exec, s[{SM+2*n}:{SM+2*n+1}]")
            a(f"ds_add_rtn_u32 v{RK+n}, v{RA+n}, {V('ONE')} offset:{CNT}")
        a("s_mov_b64 exec, -1")
        for n in g:
            if n >= 9 or n < 3 or EALL:
                a(f"v_bfe_u32 v{rec(n)}, v{rec(n)}, 14, 12")
                a(f"v_lshl_add_u32 v{rec(n)}, v{rec(n)}, 5, {V('EB')}")
    a("K_P1D:")
    EPF = opt.get("EPF", 3)
    a(f"""
    s_waitcnt lgkmcnt(0)
    s_barrier
    ds_read_b32 {V('T2')}, {V('T0')} offset:{CNT}
    ds_read_b128 {VR('GR',0,4)}, {V('ZR')} offset:{CNT+496}
    """)
    stamp(10)
    def epf(n0):
        a(f"s_mov_b32 s{sV}, {EPF << 26:#x}")
        for q in range(3): a(f"v_cmp_gt_u32 {cm[q]}, s{sV}, v{XV+n0+q}")
        for q in range(3):
            n = n0 + q
            a(f"s_and_b64 exec, {cm[q]}, s[{SM+2*n}:{SM+2*n+1}]")
            a(f"s_cbranch_scc0 K_EP{n}\nbuffer_load_dword {V('DUM')}, v{rec(n)}, s[8:11], 0 offen\nK_EP{n}:")
        a("s_mov_b64 exec, -1")
    if EPF: epf(0)
    if EPF and EALL: epf(3); epf(6)
    if XE < XT and XL_ == 1: xpf(XE, XT, V('DUM'))
    a(f"""
    s_waitcnt lgkmcnt(0)
    v_and_b32 {V('T1')}, -64, {V('T2')}
    v_and_b32 {V('T2')}, 63, {V('T2')}
    v_add_u32 {V('T2')}, 12, {V('T2')}
    v_and_b32 {V('T2')}, -16, {V('T2')}
    v_lshl_or_b32 {V('T2')}, {V('T2')}, 16, {V('T1')}
    v_mov_b32 {V('T3')}, {V('T2')}
    """)
    fl = [f"v_bfe_u32 v{rec(n)}, v{rec(n)}, 14, 12" for n in range(3, 9)] + [f"v_lshl_add_u32 v{rec(n)}, v{rec(n)}, 5, {V('EB')}" for n in range(3, 9)] + ["s_nop 0"]
    if EALL: fl = ["s_nop 0"] * 13
    for mod in DPP:
        a(fl.pop(0)); a(fl.pop(0))
        a(f"v_add_u32_dpp {V('T3')}, {V('T3')}, {V('T3')} {mod}")
    a(fl.pop(0))
    if opt.get("ST2"): stamp(11)
    a(f"""
    v_readlane_b32 s{sT}, {V('T3')}, 63
    v_readlane_b32 s{sU}, {V('T3')}, {D0-1}
    v_sub_u32 {V('T3')}, {V('T3')}, {V('T2')}
    s_lshr_b32 s{sNP}, s{sT}, 16
    s_add_u32 s{sNP}, s{sNP}, 63
    s_and_b32 s{sNP}, s{sNP}, -64
    s_and_b32 s{sU}, s{sU}, 0xffff
    v_lshrrev_b32 {V('T2')}, 16, {V('T3')}
    v_and_b32 {V('T3')}, 0xffff, {V('T3')}
    v_sub_u32 {V('T2')}, {V('T2')}, {V('T1')}
    v_lshl_or_b32 {V('T3')}, {V('T1')}, 16, {V('T3')}
    v_add_u32 {V('T2')}, s{sU}, {V('T2')}
    s_mov_b32 exec_lo, {(-(1 << D0)) & 0xffffffff:#x}
    v_add_u32 {V('T3')}, s{sNP}, {V('T3')}
    s_mov_b64 exec, -1
    ds_write2_b32 {V('T0')}, {V('T3')}, {V('T2')} offset0:128 offset1:129
    """)
    for g in groups("K_P2A"):
        for n in g: a(f"ds_read_b64 {vr(RB+2*n,2)}, v{RA+n} offset:512")
    a(f"""
    K_P2A:
    s_cmp_eq_u32 s{sFIRST}, 0
    s_cbranch_scc1 K_CHK
    v_readfirstlane_b32 s{sFLG}, {V('GR',0)}
    v_readfirstlane_b32 s{sV}, {V('GR',2)}
    s_mov_b32 s{sFIRST}, 0
    s_and_b32 s{sK}, s{sT}, 0xffff
    s_add_u32 s{sK}, s{sK}, s{sNP}
    s_cmp_gt_u32 s{sK}, {4*CAP}
    s_cselect_b32 s{sK}, {6*NL}, 0
    s_max_u32 s{sV}, s{sK}, s{sV}
    s_cmp_eq_u32 s{sV}, 0
    s_cbranch_scc1 K_CHK
    s_add_u32 s{sRND}, s{sV}, 5
    s_mul_i32 s{sRND}, s{sRND}, 10923
    s_lshr_b32 s{sRND}, s{sRND}, 16
    s_mov_b32 s{sL}, 6
    s_mov_b32 s{sADV}, 0
    s_waitcnt lgkmcnt(0)
    s_branch K_ROUND
    K_CHK:
    """)
    for x in fl: a(x)
    if EPF and not EALL: epf(3); epf(6)
    if XE < XT and XL_ == 2: xpf(XE, XT, V('DUM'))
    a(f"""
    s_waitcnt lgkmcnt(0)
    """)
    if opt.get("ST2"): stamp(8)
    for g in groups("K_P2D"):
        for n in g: a(f"v_cmp_lt_u32_sdwa {cm[n%3]}, v{RK+n}, v{RB+2*n} src0_sel:DWORD src1_sel:WORD_1")
        for n in g: a(f"v_cndmask_b32 v{RB+2*n}, v{RB+2*n+1}, v{RB+2*n}, {cm[n%3]}")
        for n in g: a(f"v_add_u32_sdwa v{RB+2*n}, v{RB+2*n}, v{RK+n} dst_sel:WORD_0 dst_unused:UNUSED_PAD src0_sel:DWORD src1_sel:DWORD")
        for n in g:
            a(f"s_mov_b64 exec, s[{SM+2*n}:{SM+2*n+1}]")
            a(f"ds_write2st64_b32 v{RB+2*n}, v{XV+n}, v{rec(n)} offset0:{XLO//256} offset1:{ELO//256}")
        a("s_mov_b64 exec, -1")
    a(f"""
    K_P2D:
    """)
    HS = opt.get("HS", 0)
    sMODE, sHK = 34, 35
    a(f"""
    """)
    if opt.get("ST2"): stamp(12)
    a(f"""
    s_waitcnt lgkmcnt(0)
    s_barrier
    """)
    stamp(3)
    uid = [0]
    lds = []
    def em(x):
        if isinstance(x, tuple):
            if x[0] == "need":
                n = len(lds) - 1 - max(i for i, t in enumerate(lds) if t == x[1])
                a(f"s_waitcnt lgkmcnt({min(n,15)})")
                return
            lds.append(x[1]); x = x[0]
        if opt.get("NODMA") and ("buffer_load" in x): return
        if opt.get("NOE") and ("buffer_load" in x and "s[8:11]" in x): return
        if opt.get("NOX") and ("buffer_load" in x and "s[4:7]" in x): return
        if opt.get("NOXF") and x.startswith("ds_read_b128") and lds[-1].startswith("xf"): x = "ds_read_b32 " + V('DUM') + ", " + V('ZR')
        a(x)
    def list_read(off):
        return [(f"ds_read_b128 {VR('XL',0,4)}, {V('PX')} offset:{off*1024}", "list"), (f"ds_read_b32 {V('EL')}, {V('PE')} offset:{off*1024}", "list")]
    def pf_addr():
        return [f"v_add_u32 {V('EL')}, {V('EL')}, {V('EH')}"] + \
               [f"v_mad_u32_u16 {V('XL',q)}, {V('XL',q)}, s{s128}, {V('XA',q)}" for q in range(4)]
    def e_load(slot): return f"buffer_load_dwordx4 {VR('EF',4*slot,4)}, {V('EL')}, s[8:11], 0 offen {['','sc1','nt','sc0','sc0 sc1'][opt.get('EFL',0)]}"
    def x_m0(slot, q): return f"s_add_u32 m0, s{sRING}, {slot*SLOT+1024*q}"
    def x_load(q): return f"buffer_load_dwordx4 {V('XL',q)}, s[4:7], 0 offen {['','sc1','nt','sc0','sc0 sc1'][opt.get('XFL',0)]} lds"
    def guarded(x):
        uid[0] += 1
        return [f"s_cbranch_vccnz K_SK{uid[0]}", x, f"K_SK{uid[0]}:"]
    def gl_read(gen):
        if gen: o = [(f"ds_read2_b32 {VR('GR',0,2)}, {V('PG')} offset0:0 offset1:4", "gl"), (f"ds_read2_b32 {VR('GR',2,2)}, {V('PG')} offset0:8 offset1:12", "gl")]
        else: o = [(f"ds_read_b32 {V('GR',0)}, {V('PG')}", "gl")]
        return o + [f"v_add_u32 {V('PG')}, 1024, {V('PG')}"]
    def gl_use(gen):
        n = 4 if gen else 1
        return [f"v_add_u32_sdwa {V('GA',g)}, {V('GR',g)}, {V('J8')} dst_sel:DWORD dst_unused:UNUSED_PAD src0_sel:WORD_1 src1_sel:DWORD" for g in range(n)] + \
               [(f"ds_read_b64 {VR('EA',2*g,2)}, {V('GA',g)} offset:{ROW}", "ea") for g in range(n)]
    def frag_reads(slot): return [(f"ds_read_b128 {VR('XF',4*ks,4)}, {V('XR',ks)} offset:{slot*SLOT}", f"xf{ks}") for ks in range(4)]
    def m_chain(nt, slot):
        z = VR('Z',16*nt,16); h = VR('H',16*nt,16)
        o = [mf(z, VR('EF',4*slot,4), VR('WZ',20*nt+16,4), "0")]
        o += [mf(z, VR('XF',4*ks,4), VR('WZ',20*nt+4*ks,4), z) for ks in range(4)]
        o += [mf(h, VR('XF',4*ks,4), VR('WH',16*nt+4*ks,4), "0" if ks == 0 else h) for ks in range(4)]
        return o
    def v_seq(nt, gen):
        z = r['Z'] + 16*nt; h = r['H'] + 16*nt; s = r['SUM']; ea = r['EA']
        o = [(f"v_exp_f32 v{z+i}, v{z+i}", 8) for i in range(16)]
        if nt == 0: o += [(("need", "ea"), 0)]
        o += [(f"v_pk_fma_f32 {vr(z+i,2)}, {vr(z+i,2)}, {vr(ea + (2*(i>>2) if gen else 0),2)}, 1.0 op_sel:[0,{nt},0] op_sel_hi:[1,{nt},0]", 0) for i in range(0,16,2)]
        o += [(f"v_rcp_f32 v{z+i}, v{z+i}", 8) for i in range(16)]
        if gen:
            o += [(f"v_pk_mul_f32 {vr(s+2*g,2)}, {vr(z+4*g,2)}, {vr(h+4*g,2)}", 0) for g in range(4)]
            o += [(f"v_pk_fma_f32 {vr(s+2*g,2)}, {vr(z+4*g+2,2)}, {vr(h+4*g+2,2)}, {vr(s+2*g,2)}", 0) for g in range(4)]
            o += [(f"v_add_f32 v{s+2*g}, v{s+2*g}, v{s+2*g+1}", 4) for g in range(4)]
            o += [(f"v_cvt_f64_f32 {vr(s+2*g,2)}, v{s+2*g}", 4) for g in range(4)]
        else:
            ACC1 = opt.get("ACC1", 1)
            for i in range(8):
                d = vr(s + (0 if ACC1 else 2*(i & 1)), 2)
                if i < (1 if ACC1 else 2): o.append((f"v_pk_mul_f32 {d}, {vr(z+2*i,2)}, {vr(h+2*i,2)}", 0))
                else: o.append((f"v_pk_fma_f32 {d}, {vr(z+2*i,2)}, {vr(h+2*i,2)}, {d}", 0))
            if not ACC1: o.append((f"v_pk_add_f32 {vr(s,2)}, {vr(s,2)}, {vr(s+2,2)}", 0))
            o.append((f"v_add_f32 v{s}, v{s}, v{s+1}", 4))
            o.append((f"v_cvt_f64_f32 {vr(s,2)}, v{s}", 4))
        return o
    def flush(nt, gen): return [(f"ds_add_f64 {V('GA',g)}, {VR('SUM',2*g,2)} offset:{AGG+256*nt}", "fl") for g in range(4 if gen else 1)]
    cold = []
    def exact_xa(nt):
        uid[0] += 1
        z = r['Z'] + 16*nt
        a(f"s_cmp_lg_u32 s{sFLG}, 0\ns_cbranch_scc1 K_FB{uid[0]}\nK_FR{uid[0]}:")
        o = [f"K_FB{uid[0]}:", "s_waitcnt lgkmcnt(0)"]
        o += [f"ds_read_b32 {V('EA',2*g+nt)}, {V('GA',g)} offset:{ROW+256+4*nt}" for g in range(4)]
        o += ["s_waitcnt lgkmcnt(0)", "s_nop 7"]
        o += [f"v_add_f32 v{z+i}, v{z+i}, {V('EA',2*(i>>2)+nt)}" for i in range(16)]
        o += [f"v_mov_b32 {V('EA',2*g+nt)}, 1.0" for g in range(4)]
        o += [f"s_branch K_FR{uid[0]}"]
        cold.extend(o)
    POS = {0: [0, 24, 48, 72, 96, 128, 152, 176, 200], 1: [0, 24, 48, 72, 128, 152, 176, 200, 224], 2: [0, 24, 48, 72, 96, 128, 160, 192, 224], 3: [0, 16, 40, 64, 88, 128, 144, 168, 192], 4: [0, 24, 48, 72, 104, 128, 160, 192, 224], 5: [0, 32, 64, 96, 128, 152, 176, 200, 224], 6: [0, 24, 48, 72, 96, 136, 168, 200, 232]}[opt.get("POS", 0)]
    def weave(vs, ms, before, after):
        cost = 0; mi = 0
        for ins, c in vs:
            while mi < len(ms) and cost >= POS[mi] and c > 0:
                for x in before.get(mi, []): em(x)
                a(ms[mi])
                for x in after.get(mi, []): em(x)
                mi += 1
            em(ins)
            cost += c
        assert mi == len(ms)
    def tick():
        if opt.get("TICK"):
            a(f"s_memtime s[56:57]\ns_waitcnt lgkmcnt(0)\ns_lshl_b64 exec, 1, s58\nv_mov_b32 {V('PO')}, s56\ns_mov_b64 exec, -1\ns_add_u32 s58, s58, 1")
    def iteration(u, gen):
        nslot = 1 - u
        lds.append("ea")
        tick()
        if PRIO and not gen:
            uid[0] += 1
            a(f"s_cmp_le_u32 s{sK}, {PT}\ns_cbranch_scc1 K_PB{uid[0]}\nK_PR{uid[0]}:")
            back = f"K_PR{uid[0]}"
            cold.extend([f"K_PB{uid[0]}:", "s_setprio 2"])
            if HS:
                cold.extend([f"s_lshl_b32 s{sT}, s{sHK}, 8",
                             f"s_cmp_eq_u32 s{sK}, 4", f"s_cselect_b32 s{sU}, s{sT}, 0",
                             f"v_subrev_u32 {V('PX')}, s{sU}, {V('PX')}", f"v_subrev_u32 {V('PE')}, s{sU}, {V('PE')}",
                             f"s_cmp_eq_u32 s{sK}, 2", f"s_cselect_b32 s{sU}, s{sT}, 0",
                             f"v_subrev_u32 {V('PG')}, s{sU}, {V('PG')}"])
            cold.extend([f"s_cmp_lg_u32 s{sK}, 1", f"s_cbranch_scc1 {back}", "s_setprio 1"])
            if HS: cold.extend([f"s_cmp_lg_u32 s{sMODE}, 0", "s_cbranch_scc1 K_HALF"])
            cold.append(f"s_branch {back}")
        if gen: exact_xa(0)
        weave(v_seq(0, gen), m_chain(1, u), {}, {8: ["s_waitcnt vmcnt(0)"] + frag_reads(nslot)})
        for x in flush(0, gen): em(x)
        if gen or not HS:
            a(f"s_sub_u32 s{sK}, s{sK}, 1\ns_cmp_eq_u32 s{sK}, 0\ns_cbranch_scc1 K_LAST{'G' if gen else 'P'}")
        else:
            uid[0] += 1
            a(f"s_sub_u32 s{sK}, s{sK}, 1\ns_cmp_le_u32 s{sK}, s{sHK}\ns_cbranch_scc1 K_SW{uid[0]}\nK_SR{uid[0]}:")
            cold.extend([f"K_SW{uid[0]}:", f"s_cmp_eq_u32 s{sK}, 0", "s_cbranch_scc1 K_LASTP"])
            cold.extend([f"v_mov_b32 {V('WZ',i)}, {V('WZ',20+i)}" for i in range(20)] + [f"v_mov_b32 {V('WH',i)}, {V('WH',16+i)}" for i in range(16)])
            cold.append(f"s_branch K_SR{uid[0]}")
        if gen: exact_xa(1)
        before = {i + 1: [("need", f"xf{i}"), x_m0(u, i)] for i in range(4)}
        before[7] = [("need", "gl")] + pf_addr()
        after = {0: [e_load(u)]}
        for i in range(4): after[i + 1] = [x_load(i)]
        after[4] = after[4] + list_read(u + 3) + gl_read(gen)
        weave(v_seq(1, gen), m_chain(0, nslot), before, after)
        for x in flush(1, gen) + gl_use(gen): em(x)
        if u == 1:
            a(f"v_add_u32 {V('PX')}, 2048, {V('PX')}")
            a(f"v_add_u32 {V('PE')}, 2048, {V('PE')}")
    PT = opt.get("PT", 4)
    PRIO = opt.get("PRIO", 1)
    if opt.get("TICK"):
        a(f"s_mov_b32 s58, 0\nv_mov_b32 {V('PO')}, 0")
        tick()
    for x in list_read(0) + gl_read(True) + [("need", "list")] + pf_addr(): em(x)
    a(e_load(0))
    for q in range(4): a(x_m0(0, q) + "\ns_nop 0\n" + x_load(q))
    for x in list_read(1): em(x)
    a(f"""
    s_and_b32 s{sT}, s{sT}, 0xffff
    s_add_u32 s{sT}, s{sT}, s{sNP}
    s_add_u32 s{sT}, s{sT}, 127
    s_lshr_b32 s{sT}, s{sT}, 7
    s_sub_u32 s{sK}, 7, s{sW}
    s_add_u32 s{sU}, s{sU}, s{sNP}
    s_add_u32 s{sU}, s{sU}, 127
    s_lshr_b32 s{sU}, s{sU}, 7
    s_add_u32 s{sNP}, s{sU}, s{sK}
    s_mov_b32 s{sTG}, s{sU}
    s_add_u32 s{sK}, s{sT}, s{sK}
    s_mov_b32 s{sSPIN}, s{sT}
    s_lshr_b32 s{sNP}, s{sNP}, 3
    s_lshr_b32 s{sK}, s{sK}, 3
    s_cmp_lg_u32 s{sFLG}, 0
    s_cselect_b32 s{sNP}, -1, s{sNP}
    s_cmp_eq_u32 s{sK}, 0
    s_cbranch_scc1 K_WEND
    """)
    if HS:
        a(f"""
        s_and_b32 s{sT}, s{sSPIN}, 3
        s_xor_b32 s{sU}, s{sSPIN}, s{sW}
        s_and_b32 s{sU}, s{sU}, 4
        s_and_b32 s{sMODE}, s{sW}, 1
        s_add_u32 s{sU}, s{sU}, s{sMODE}
        s_cmp_eq_u32 s{sT}, 3
        s_cselect_b32 s{sT}, 0, s{sT}
        s_bfe_u32 s{sMODE}, s{sW}, 0x10001
        s_add_u32 s{sMODE}, s{sMODE}, 1
        s_cmp_lt_u32 s{sU}, s{sT}
        s_cselect_b32 s{sMODE}, s{sMODE}, 0
        s_add_u32 s{sT}, s{sTG}, 40
        s_cmp_le_u32 s{sT}, s{sSPIN}
        s_cselect_b32 s{sMODE}, s{sMODE}, 0
        s_cmp_lg_u32 s{sFLG}, 0
        s_cselect_b32 s{sMODE}, 0, s{sMODE}
        s_lshr_b32 s{sHK}, s{sMODE}, 1
        s_add_u32 s{sK}, s{sK}, s{sHK}
        """)
    XR_ = opt.get("XREST", 0)
    if XR_ and XT < 40: xpf(max(XT, XE), 40, V('DUM'))
    for nt in range(2):
        for ks in range(5): tr(r['WZ'] + 20*nt + 4*ks, V('TR'), 2048*ks + 64*nt)
        for ks in range(4): tr(r['WH'] + 16*nt + 4*ks, V('TR'), 80*128 + 2048*ks + 64*nt)
    a("s_waitcnt lgkmcnt(0)")
    for x in pf_addr() + gl_use(True): em(x)
    a(f"s_waitcnt vmcnt({1 if XR_ and XT < 40 else 0})")
    stamp(4)
    for x in frag_reads(0): em(x)
    if PRIO: a("s_setprio 3")
    for i, x in enumerate(m_chain(0, 0)):
        if 1 <= i <= 4: em(("need", f"xf{i-1}")); a(x_m0(1, i-1))
        a(x)
        if i == 0:
            a(e_load(1))
        if 1 <= i <= 4:
            a(x_load(i-1))
        if i == 4:
            for y in list_read(2): em(y)
    for x in [("need", "list")] + pf_addr(): em(x)
    a("s_nop 3")
    if opt.get("STAMP"): a("s_memtime s[96:97]\ns_mov_b32 s100, s%d\ns_waitcnt lgkmcnt(0)" % sK)
    a(f"s_cmp_eq_u32 s{sNP}, 0\ns_cbranch_scc1 K_PURE0\nK_GEN0:")
    iteration(0, True)
    a(f"s_sub_u32 s{sNP}, s{sNP}, 1\ns_cmp_eq_u32 s{sNP}, 0\ns_cbranch_scc1 K_PURE1")
    iteration(1, True)
    a(f"s_sub_u32 s{sNP}, s{sNP}, 1\ns_cmp_eq_u32 s{sNP}, 0\ns_cbranch_scc0 K_GEN0")
    if "AL" in opt:
        a("s_branch K_PURE0\n.p2align 6")
        for i in range(opt["AL"]): a("s_nop 0")
    a("K_PURE0:")
    iteration(0, False)
    a("K_PURE1:")
    iteration(1, False)
    a("s_branch K_PURE0\nK_LASTG:")
    exact_xa(1)
    for x, c in v_seq(1, True): em(x)
    for x in flush(1, True): em(x)
    a("s_branch K_WEND")
    for x in cold: a(x)
    if HS:
        a(f"""
        K_HALF:
        s_setprio 0
        s_lshl_b32 s{sT}, s{sHK}, 8
        s_cmp_lg_u32 s{sHK}, 0
        s_cselect_b64 vcc, -1, 0
        s_waitcnt lgkmcnt(0)
        v_add_u32 {V('GA',0)}, s{sT}, {V('GA',0)}
        v_cndmask_b32 {V('EA',0)}, {V('EA',0)}, {V('EA',1)}, vcc
        """)
        lds.append("ea")
        for x, c in v_seq(0, False): em(x)
        for x in flush(0, False): em(x)
        a("s_branch K_WEND")
    a("K_LASTP:")
    if PRIO: a("s_setprio 0")
    for x, c in v_seq(1, False): em(x)
    for x in flush(1, False): em(x)
    a("K_WEND:")
    tick()
    stamp(5)
    if opt.get("STAMP"): a("s_memtime s[98:99]")
    a(f"""
    s_waitcnt vmcnt(0) lgkmcnt(0)
    s_sub_u32 s{sRND}, s{sRND}, 1
    s_cmp_gt_i32 s{sRND}, 0
    s_cbranch_scc1 K_ROUND
    v_lshrrev_b32 {V('T1')}, 3, v0
    v_and_b32 {V('T3')}, 7, v0
    v_lshlrev_b32 {V('T1')}, 10, {V('T1')}
    v_lshl_add_u32 {V('T1')}, {V('T3')}, 6, {V('T1')}
    v_add_u32 {V('T0')}, s{sNODE}, {V('T16')}
    v_cmp_gt_u32 vcc, s{sNB8}, v0
    s_mov_b32 s{sT}, {NEG_LOG2E:#x}
    s_barrier
    """)
    stamp(6)
    a(f"""
    s_or_b32 s{sU}, s{sW}, s2
    s_cmp_lg_u32 s{sU}, 0
    s_cbranch_scc1 K_NOTAG
    v_mov_b32 {V('T2')}, s{sN0}
    s_mov_b32 s{sU}, {T_OFF}
    s_mov_b64 exec, 1
    buffer_store_dword {V('T2')}, {V('ZR')}, s[12:15], s{sU} offen sc1
    s_mov_b64 exec, -1
    K_NOTAG:
    """)
    a(f"""
    s_and_b64 exec, exec, vcc
    s_cbranch_scc0 K_FIN
    ds_read_b128 {VR('Z',16,4)}, {V('T1')} offset:{AGG}
    ds_read_b128 {VR('Z',20,4)}, {V('T1')} offset:{AGG+16}
    ds_read_b128 {VR('Z',24,4)}, {V('T1')} offset:{AGG+32}
    ds_read_b128 {VR('Z',28,4)}, {V('T1')} offset:{AGG+48}
    s_waitcnt lgkmcnt(0)
    """)
    for i in range(8): a(f"v_cvt_f32_f64 {V('Z',i)}, {VR('Z',16+2*i,2)}")
    for i in range(8): a(f"v_mul_f32 {V('H',i)}, s{sT}, {V('Z',i)}")
    for i in range(8): a(f"v_exp_f32 {V('H',i)}, {V('H',i)}")
    for i in range(8): a(f"v_add_f32 {V('H',i)}, 1.0, {V('H',i)}")
    for i in range(8): a(f"v_rcp_f32 {V('H',i)}, {V('H',i)}")
    for i in range(8): a(f"v_mul_f32 {V('Z',i)}, {V('Z',i)}, {V('H',i)}")
    for q in range(4): a(f"v_cvt_pk_bf16_f32 {V('H',8+q)}, {V('Z',2*q)}, {V('Z',2*q+1)}")
    if "OTH" in opt:
        a(f"s_cmp_lt_u32 s{sSPIN}, {opt['OTH']}\ns_cbranch_scc1 K_ST1")
        a(f"global_store_dwordx4 {V('T0')}, {VR('H',8,4)}, s[16:17]\ns_branch K_FIN\nK_ST1:")
        a(f"global_store_dwordx4 {V('T0')}, {VR('H',8,4)}, s[16:17] sc1")
    else:
        a(f"global_store_dwordx4 {V('T0')}, {VR('H',8,4)}, s[16:17] {['','sc1','nt'][opt.get('OST',1)]}")
    a("K_FIN:")
    if opt.get("TICK"):
        a(f"""
        s_mov_b64 exec, -1
        s_lshl_b32 s58, s2, 11
        s_add_u32 s58, s58, 0x500000
        v_lshl_add_u32 {V('T2')}, v0, 2, s58
        global_store_dword {V('T2')}, {V('PO')}, s[12:13]
        """)
    if opt.get("STAMP"):
        a("s_waitcnt vmcnt(0)")
        stamp(7)
        t = r['T1']
        a(f"""
        s_waitcnt lgkmcnt(0)
        s_mov_b64 exec, 1
        v_lshrrev_b32 v{t}, 6, v0
        s_lshl_b32 s68, s2, 4
        v_add_u32 v{t}, s68, v{t}
        v_lshlrev_b32 v{t}, 6, v{t}
        v_add_u32 v{t}, {STAMP_OFF + 0x40000}, v{t}
        """)
        for i in range(16):
            a(f"v_mov_b32 v{t+1}, s{95 if i == 9 else 70+2*i}")
            a(f"global_store_dword v{t}, v{t+1}, s[12:13] offset:{4*i}")
    if "SPIN" in opt:
        k = opt["SPIN"]; k0 = opt.get("SPIN0", 0)
        if k >= 100: a("s_mov_b32 s43, 0")
        else: a(f"s_sub_u32 s43, s{70+2*k}, s{70+2*k0}\ns_max_i32 s43, s43, 0\ns_mul_i32 s43, s43, 10")
        a("""
        s_add_u32 s43, s43, 20000
        s_min_u32 s43, s43, 100000
        F_SPIN:
        s_sleep 8
        s_memrealtime s[44:45]
        s_waitcnt lgkmcnt(0)
        s_sub_u32 s44, s44, s70
        s_cmp_lt_u32 s44, s43
        s_cbranch_scc1 F_SPIN
        """)
    a("K_END:")
    return a.text(), NV, LDS

HDR = open("cdna_kernels/%s.s.ref" % NAME).read().split("; Override launch")[0]

DOC = """;
"""

def generate(opt):
    body, nv, lds = gen(opt)
    main = NAME + "_kernel"
    s = HDR
    s += f"; @launch grid=(256,1,1) block=(512,1,1) lds={lds}\n"
    s += DOC
    s += '.amdgcn_target "amdgcn-amd-amdhsa--gfx950"\n.text\n'
    s += f".globl {main}\n.p2align 8\n.type {main},@function\n{main}:\n{body}s_endpgm\n"
    s += f""".section .rodata,"a"
.p2align 6
.amdhsa_kernel {main}
  .amdhsa_next_free_vgpr {nv}
  .amdhsa_next_free_sgpr 102
  .amdhsa_accum_offset {(nv + 3) // 4 * 4}
  .amdhsa_group_segment_fixed_size 0
  .amdhsa_kernarg_size 80
  .amdhsa_user_sgpr_count 2
  .amdhsa_user_sgpr_kernarg_segment_ptr 1
  .amdhsa_system_sgpr_workgroup_id_x 1
.end_amdhsa_kernel
"""
    return s

if __name__ == "__main__":
    opt = {}
    out = f"cdna_kernels/{NAME}.s"
    for x in sys.argv[1:]:
        if "=" in x:
            k, v = x.split("="); opt[k] = int(v)
        else: out = x
    open(out, "w").write(generate(opt))
    print("wrote", out)
```
